```python
import torch

def _softmax(x, axis=-1):
    return torch.softmax(x, dim=axis)
def _gelu(x):
    return torch.nn.functional.gelu(x, approximate="tanh")
def _silu(x):
    return torch.nn.functional.silu(x)
def _sigmoid(x):
    return torch.sigmoid(x)
def _layernorm(x, axis=-1, eps=1e-5):
    m = x.mean(dim=axis, keepdim=True)
    v = x.var(dim=axis, keepdim=True, unbiased=False)
    return (x - m) / torch.sqrt(v + eps)
def _scatter_add(tgt, idx, src, axis=0):
    return tgt.clone().index_add_(axis, idx, src)
def _segment_sum(src, seg, n):
    out = torch.zeros((n,) + src.shape[1:], dtype=src.dtype)
    return out.index_add_(0, seg, src)
def _pad(x, pw):
    flat = tuple(v for pair in reversed(pw) for v in pair)
    return torch.nn.functional.pad(x, flat)

kernel_name = 'standalone__gqa_block_cached__near_ridge'

def setup_inputs():

    _w = (lambda a: (lambda t: t.to(torch.bfloat16) if t.is_floating_point() else t)(torch.as_tensor(a)))
    B, Sq, D = 8, 144, 640
    Hq, Hkv, Sk, Dh = 32, 32, 1024, 128
    assert Hq % Hkv == 0, (Hq, Hkv)
    return {
        "x": _w((lambda *s: torch.randn(*s, dtype=torch.bfloat16) * 0.8)(B, Sq, D)),
        "k_cache": _w((lambda *s: torch.randn(*s, dtype=torch.bfloat16) * 0.8)(B, Hkv, Sk, Dh)),
        "v_cache": _w((lambda *s: torch.randn(*s, dtype=torch.bfloat16) * 0.05)(B, Hkv, Sk, Dh)),
        "wq": _w((lambda *s: torch.randn(*s, dtype=torch.bfloat16) * 0.8)(D, Hq * Dh) * (D ** -0.5)),
        "wo": _w((lambda *s: torch.randn(*s, dtype=torch.bfloat16) * 0.05)(Hq * Dh, D) * ((Hq * Dh) ** -0.5)),
    }

def reference(x, k_cache, v_cache, wq, wo):
    B, Sq, D = x.shape
    Hq, Dh = 32, 128
    Hkv = k_cache.shape[1]
    rep = Hq // Hkv
    q = (lambda x, *d: x.permute(*d))((x @ wq).reshape(B, Sq, Hq, Dh), 0, 2, 1, 3)
    k = (lambda x, n, axis: torch.repeat_interleave(x, n, dim=axis))(k_cache, rep, axis=1)
    v = (lambda x, n, axis: torch.repeat_interleave(x, n, dim=axis))(v_cache, rep, axis=1)
    scores = torch.einsum("bhqd,bhkd->bhqk", q, k) * (Dh ** -0.5)
    p = _softmax(scores, axis=-1)
    o = torch.einsum("bhqk,bhkd->bhqd", p, v)
    return (lambda x, *d: x.permute(*d))(o, 0, 2, 1, 3).reshape(B, Sq, Hq * Dh) @ wo
```

```python
import re

TRANS = ("v_exp_f32", "v_log_f32", "v_rcp_f32", "v_rsq_f32", "v_sqrt_f32", "v_sin_f32", "v_cos_f32")
_REG = re.compile(r"^-?\|?(?:abs\()?([vas])(?:(\d+)|\[(\d+):(\d+)\])\)?\|?$")


def regs_of(tok):
    tok = tok.strip()
    if tok in ("vcc", "exec", "m0", "scc"):
        return [tok]
    if tok in ("vcc_lo", "vcc_hi"):
        return ["vcc"]
    if tok in ("exec_lo", "exec_hi"):
        return ["exec"]
    m = _REG.match(tok)
    if not m:
        return []
    k = m.group(1)
    if m.group(2) is not None:
        return [(k, int(m.group(2)))]
    return [(k, i) for i in range(int(m.group(3)), int(m.group(4)) + 1)]


def mfma_passes(op):
    if "32x32x16" in op or "32x32x8" in op:
        return 8
    if "16x16x32" in op or "16x16x16" in op:
        return 4
    raise ValueError(op)


class Ins:
    def __init__(self, text, tok=None):
        self.text = text.strip()
        self.tok = tok
        self.rd = []
        self.wr = []
        self.kind = "other"
        self.srcc = []
        self.srcab = []
        self.data = []
        t = self.text.split(";")[0].strip()
        if t.endswith(":") or t.startswith("."):
            self.kind = "label"
            self.op = ""
            return
        parts = t.split(None, 1)
        op = parts[0]
        op = re.sub(r"_e(32|64)$", "", op)
        self.op = op
        rest = parts[1] if len(parts) > 1 else ""
        ops = [o.strip() for o in rest.split(",")] if rest else []
        mods = ""
        if ops:
            last = ops[-1].split(None, 1)
            m = re.search(r"\s(op_sel|op_sel_hi|neg_lo|neg_hi|offset|offen|cbsz|bitop3|row_|quad_perm|clamp|nt|sc0|sc1|lds|off\b)", " " + rest)
            if m:
                body = (" " + rest)[: m.start()]
                mods = (" " + rest)[m.start():]
                ops = [o.strip() for o in body.split(",") if o.strip()]
        self.mods = mods
        R = lambda i: regs_of(ops[i]) if i < len(ops) else []
        allsrc = lambda i: [r for o in ops[i:] for r in regs_of(o)]
        if op.startswith("v_mfma"):
            self.kind = "mfma"
            self.passes = mfma_passes(op)
            self.wr = R(0)
            self.srcab = R(1) + R(2)
            self.srcc = R(3)
            self.rd = self.srcab + self.srcc
        elif op.startswith("v_"):
            self.kind = "valu"
            if op.startswith("v_permlane") and "swap" in op:
                self.wr = R(0) + R(1)
                self.rd = R(0) + R(1)
            elif op.startswith("v_cmpx"):
                self.wr = R(0) + ["exec"]
                self.rd = allsrc(1)
            elif op in ("v_add_co_u32", "v_sub_co_u32", "v_addc_co_u32", "v_subb_co_u32"):
                self.wr = R(0) + R(1)
                self.rd = allsrc(2)
            else:
                self.wr = R(0)
                self.rd = allsrc(1)
                if op.startswith("v_fmac") or op.startswith("v_pk_fmac") or op.startswith("v_dot2c"):
                    self.rd += R(0)
        elif op.startswith("ds_read") or op.startswith("ds_bpermute") or op.startswith("ds_swizzle"):
            self.kind = "ds"
            self.wr = R(0)
            self.rd = allsrc(1)
        elif op.startswith("ds_write") or op.startswith("ds_add"):
            self.kind = "ds"
            self.rd = allsrc(0)
        elif op.startswith("buffer_load") or op.startswith("global_load"):
            self.kind = "vmem"
            if re.search(r"\blds\b", mods) or "_lds_" in op:
                self.rd = allsrc(0) + ["m0"]
                self.dma = True
            else:
                self.wr = R(0)
                self.rd = allsrc(1)
        elif op.startswith("buffer_store") or op.startswith("global_store"):
            self.kind = "vmem"
            self.rd = allsrc(0)
            d = R(0) if op.startswith("buffer") else R(1)
            if len(d) >= 3:
                self.data = d
        elif op.startswith("buffer_atomic") or op.startswith("global_atomic"):
            self.kind = "vmem"
            self.rd = allsrc(0)
            if "sc0" in mods:
                self.wr = R(0)
        elif op in ("buffer_wbl2", "buffer_inv"):
            self.kind = "vmem"
        elif op.startswith("s_load") or op in ("s_memtime", "s_memrealtime"):
            self.kind = "smem"
            self.wr = R(0)
            self.rd = allsrc(1)
        elif op == "s_nop":
            self.kind = "nop"
            self.n = int(ops[0], 0) + 1
        elif op == "s_waitcnt":
            self.kind = "wait"
        elif op.startswith("s_cmp") or op.startswith("s_bitcmp"):
            self.kind = "salu"
            self.rd = allsrc(0)
            self.wr = ["scc"]
        elif op.startswith("s_cbranch") or op in ("s_branch", "s_barrier", "s_endpgm", "s_sleep", "s_setprio", "s_setpc_b64"):
            self.kind = "ctl"
            self.rd = allsrc(0)
            if "vcc" in op: self.rd = ["vcc"]
        elif op.startswith("s_"):
            self.kind = "salu"
            self.wr = R(0)
            self.rd = allsrc(1)
            if "saveexec" in op:
                self.wr += ["exec"]
        else:
            raise ValueError("unknown instr: " + text)


class Prog:
    def __init__(self):
        self.items = []

    def __call__(self, text, tok=None):
        for line in text.split("\n"):
            line = line.strip()
            if line:
                self.items.append(Ins(line, tok))

    def add(self, ins):
        self.items.append(ins)

    def wait_tok(self, tok):
        self.items.append(("wait_tok", tok))

    def wait_regs(self, regs):
        rr = []
        for r in regs:
            rr += regs_of(r) if isinstance(r, str) else [r]
        self.items.append(("wait_regs", rr))

    def wait_all(self, vm=True, lgkm=True):
        self.items.append(("wait_all", vm, lgkm))

    def fence(self):
        self.items.append(("fence",))

    def comment(self, s):
        self.items.append(("comment", s))

    def render(self, stats=None):
        out = []
        pos = 0
        valu_w = {}
        trans_w = {}
        mfma_w = {}
        mfma_c = {}
        sgpr_w = {}
        m0_w = -100
        st_data = {}
        exec_w = -100
        lg = []
        vm = []
        nnop = 0
        nwait = 0

        def emit_wait(vmn=None, lgn=None):
            nonlocal pos, lg, vm, nwait
            s = []
            if vmn is not None and vmn < len(vm):
                s.append(f"vmcnt({min(vmn, 63)})")
                vm = vm[len(vm) - vmn:] if vmn else []
            if lgn is not None and lgn < len(lg):
                if any(e[2] for e in lg):
                    lgn = 0
                s.append(f"lgkmcnt({min(lgn, 15)})")
                lg = lg[len(lg) - lgn:] if lgn else []
            if s:
                out.append("  s_waitcnt " + " ".join(s))
                pos += 1
                nwait += 1

        def need(q, pred):
            idx = -1
            for i, e in enumerate(q):
                if pred(e):
                    idx = i
            return None if idx < 0 else len(q) - 1 - idx

        for it in self.items:
            if isinstance(it, tuple):
                if it[0] == "wait_tok":
                    emit_wait(need(vm, lambda e: e[1] == it[1]), need(lg, lambda e: e[1] == it[1]))
                elif it[0] == "wait_regs":
                    s = set(it[1])
                    emit_wait(need(vm, lambda e: e[0] & s), need(lg, lambda e: e[0] & s))
                elif it[0] == "wait_all":
                    emit_wait(0 if it[1] else None, 0 if it[2] else None)
                elif it[0] == "fence":
                    out.append("  s_nop 15")
                    out.append("  s_nop 3")
                    pos += 20
                elif it[0] == "comment":
                    out.append("  ; " + it[1])
                continue
            I = it
            if I.kind == "label":
                out.append(I.text)
                continue
            if I.kind == "wait":
                m = re.search(r"vmcnt\((\d+)\)", I.text)
                if m:
                    n = int(m.group(1)); vm = vm[len(vm) - n:] if 0 < n < len(vm) else ([] if n == 0 else vm)
                m = re.search(r"lgkmcnt\((\d+)\)", I.text)
                if m:
                    n = int(m.group(1)); lg = lg[len(lg) - n:] if 0 < n < len(lg) else ([] if n == 0 else lg)
                out.append("  " + I.text); pos += 1
                continue
            touched = set(I.rd) | set(I.wr)
            emit_wait(need(vm, lambda e: e[0] & touched), need(lg, lambda e: e[0] & touched))
            req = pos
            def after(p, w):
                nonlocal req
                req = max(req, p + 1 + w)
            if I.kind == "mfma":
                for r in I.rd:
                    if r in valu_w: after(valu_w[r], 2)
                for r in I.srcab:
                    if r in mfma_w:
                        p, ps, _ = mfma_w[r]; after(p, {4: 8, 8: 12}[ps])
                for r in I.srcc:
                    if r in mfma_w:
                        p, ps, d = mfma_w[r]
                        if d == tuple(I.srcc) and ps == I.passes:
                            pass
                        else:
                            after(p, {4: 6, 8: 10}[ps])
                for r in I.wr:
                    if r in mfma_w and r not in I.srcc:
                        p, ps, _ = mfma_w[r]; after(p, {4: 6, 8: 10}[ps])
                after(exec_w, 4)
            if I.kind in ("valu", "ds", "vmem"):
                for r in (I.rd + I.wr):
                    if r in mfma_w:
                        p, ps, _ = mfma_w[r]; after(p, {4: 8, 8: 12}[ps])
            if I.kind == "valu":
                for r in I.wr:
                    if r in mfma_c:
                        p, ps = mfma_c[r]; after(p, {4: 3, 8: 7}[ps])
                    if r in st_data: after(st_data[r], 2)
                if I.op not in TRANS:
                    for r in I.rd:
                        if r in trans_w: after(trans_w[r], 1)
                for r in I.rd:
                    if r in sgpr_w: after(sgpr_w[r], 4 if I.op in ("v_readlane_b32", "v_writelane_b32") else 2)
                if I.op in ("v_readfirstlane_b32", "v_readlane_b32"):
                    for r in I.rd:
                        if r in valu_w: after(valu_w[r], 1)
                    after(exec_w, 4)
                if I.op.startswith("v_permlane") or "row_" in I.mods or "quad_perm" in I.mods:
                    for r in I.rd:
                        if r in valu_w: after(valu_w[r], 2)
                    after(exec_w, 5)
            if I.kind in ("ds", "vmem"):
                for r in I.wr:
                    if r in st_data: after(st_data[r], 1)
                    if r in mfma_c:
                        p, ps = mfma_c[r]; after(p, {4: 3, 8: 7}[ps])
            if I.kind == "vmem":
                for r in I.rd:
                    if r in sgpr_w: after(sgpr_w[r], 5)
                if getattr(I, "dma", False):
                    after(m0_w, 1)
            if I.kind in ("salu", "ctl", "smem"):
                for r in I.rd:
                    if r in sgpr_w: after(sgpr_w[r], 1)
            if req > pos:
                n = req - pos
                nnop += n
                while n > 0:
                    k = min(n, 16)
                    out.append(f"  s_nop {k-1}")
                    pos += k
                    n -= k
            out.append("  " + I.text)
            if I.kind == "nop":
                pos += I.n
                continue
            if I.kind == "mfma":
                for r in I.wr:
                    mfma_w[r] = (pos, I.passes, tuple(I.wr))
                    valu_w.pop(r, None); trans_w.pop(r, None)
                for r in I.srcc:
                    mfma_c[r] = (pos, I.passes)
            elif I.kind == "valu":
                for r in I.wr:
                    if r == "exec":
                        exec_w = pos
                    elif r == "vcc" or (isinstance(r, tuple) and r[0] == "s"):
                        sgpr_w[r] = pos
                    else:
                        valu_w[r] = pos
                        mfma_w.pop(r, None)
                        if I.op in TRANS: trans_w[r] = pos
                        else: trans_w.pop(r, None)
            elif I.kind == "salu":
                if "m0" in I.wr: m0_w = pos
                for r in I.wr:
                    sgpr_w.pop(r, None)
            elif I.kind == "ds":
                lg.append((set(I.wr), I.tok, False))
                for r in I.wr:
                    valu_w.pop(r, None); trans_w.pop(r, None); mfma_w.pop(r, None)
            elif I.kind == "smem":
                lg.append((set(I.wr), I.tok, True))
            elif I.kind == "vmem":
                vm.append((set(I.wr), I.tok, False))
                for r in I.wr:
                    valu_w.pop(r, None); trans_w.pop(r, None); mfma_w.pop(r, None)
                for r in I.data:
                    st_data[r] = pos
            pos += 1
        if stats is not None:
            stats.update(dict(pos=pos, nops=nnop, waits=nwait, lines=len(out)))
        return "\n".join(out) + "\n"


class Alloc:
    def __init__(self, kind, start, limit):
        self.kind = kind
        self.next = start
        self.limit = limit
        self.hi = start

    def get(self, n=1, align=None):
        a = align or (1 if n == 1 else (2 if n == 2 else 4))
        b = (self.next + a - 1) // a * a
        self.next = b + n
        assert self.next <= self.limit, f"out of {self.kind} regs"
        self.hi = max(self.hi, self.next)
        return b


def rng(kind, base, n):
    return f"{kind}{base}" if n == 1 else f"{kind}[{base}:{base+n-1}]"


def kernel_desc(name, vgpr, sgpr, accum):
    return (f'.section .rodata,"a"\n.p2align 6\n.amdhsa_kernel {name}\n'
            f"  .amdhsa_next_free_vgpr {vgpr}\n  .amdhsa_next_free_sgpr {sgpr}\n  .amdhsa_accum_offset {accum}\n"
            "  .amdhsa_group_segment_fixed_size 0\n  .amdhsa_kernarg_size 64\n  .amdhsa_user_sgpr_count 2\n"
            "  .amdhsa_user_sgpr_kernarg_segment_ptr 1\n  .amdhsa_system_sgpr_workgroup_id_x 1\n"
            "  .amdhsa_float_denorm_mode_32 3\n"
            ".end_amdhsa_kernel\n.text\n")


def kernel_head(name):
    return f".globl {name}\n.p2align 8\n.type {name},@function\n{name}:\n"
```

```python
import sys, json
from k1b import gen_k1
from k23 import gen_k2, gen_k3
def build(out, stamps=False, cfg=None):
    hdr = open("standalone__gqa_block_cached__near_ridge.s.ref").read().split("\n")
    hdr = [l for l in hdr if l.startswith(";") and "@launch" not in l and "Override" not in l and "grid=ceil" not in l]
    s = "\n".join(hdr) + "\n"
    s += "; @launch kernel=attn_kernel grid=(256,1,1) block=(512,1,1) lds=163840\n"
    s += "; @launch kernel=oproj_kernel grid=(256,1,1) block=(256,1,1) lds=163840\n"
    s += "; @launch kernel=reduce_kernel grid=(736,1,1) block=(256,1,1) lds=0\n"
    s += '.amdgcn_target "amdgcn-amd-amdhsa--gfx950"\n.text\n'
    s += gen_k1("attn_kernel", stamps, cfg) + gen_k2("oproj_kernel", stamps, cfg) + gen_k3("reduce_kernel", stamps)
    open(out, "w").write(s)
if __name__ == "__main__":
    build("v2_st.s", True)
    build("standalone__gqa_block_cached__near_ridge.s", False)
```

```python
import struct
from asmlib import *

def f2u(x):
    return struct.unpack("<I", struct.pack("<f", x))[0]

QSCALE = 1.4426950408889634 / (128 ** 0.5)
THR = 8.0

KBASE = 0
VBASE = 49152
SLOT = 16384
QA = 0
QB = 94208
XSZ = 36864
Q9X = 81920
MRG = 98304
O_STRIDE = 36864


class Stamps:
    def __init__(self, P, on, srd, base_sgpr):
        self.P = P; self.on = on; self.n = 0; self.srd = srd; self.base = base_sgpr

    def __call__(self):
        if not self.on:
            return
        assert self.n < 14
        r = self.base + 2 * self.n
        self.P(f"s_memrealtime s[{r}:{r+1}]")
        self.P("s_waitcnt lgkmcnt(0)")
        self.n += 1


def gen_k1(name="attn_kernel", stamps=False, cfg=None):
    cfg = cfg or {}
    LEAD = cfg.get("lead", 4)
    kvflag = cfg.get("kvflag", " nt")
    xwflag = cfg.get("xwflag", "")
    oflag = cfg.get("oflag", "")
    P = Prog()
    V = Alloc("v", 1, 256)
    A = Alloc("a", 0, 256)
    v = lambda b, n=1: rng("v", b, n)
    a = lambda b, n=1: rng("a", b, n)

    O = V.get(64, 4)
    O9 = V.get(32, 4)
    S = [V.get(16, 4), V.get(16, 4)]
    NEGM = V.get(16, 4)
    S9 = V.get(4); NEGM9 = V.get(4)
    PB = [V.get(8, 4), V.get(8, 4)]
    P9 = V.get(2)
    L = V.get(); L9 = V.get(); TM = V.get(); T9 = V.get()
    T = [V.get() for _ in range(8)]
    vKr = [V.get() for _ in range(8)]
    vVr = [V.get() for _ in range(4)]
    vK9r = [V.get() for _ in range(4)]
    vV9r = [V.get() for _ in range(8)]
    vKw = [V.get() for _ in range(4)]
    vVw = [V.get() for _ in range(2)]
    vLd = V.get()
    vLane = V.get()
    pool = list(range(S[1], S[1] + 16)) + list(range(NEGM, NEGM + 16)) + list(range(PB[0], PB[0] + 8)) + list(range(PB[1], PB[1] + 8))
    pg = lambda: pool.pop(0)
    vXr = [[pg() for _ in range(8)] for _ in range(2)]
    vX9r = [[pg() for _ in range(4)] for _ in range(2)]
    vWr = [[pg() for _ in range(4)] for _ in range(2)]
    vW9r = [pg() for _ in range(2)]
    vXd = [pg() for _ in range(4)]
    vWd = [pg() for _ in range(4)]
    NFR = 8
    FR = [A.get(4) for _ in range(NFR)]
    FB = [A.get(4) for _ in range(3)]
    F9 = [A.get(4) for _ in range(4)]
    FV9 = [A.get(2) for _ in range(8)]
    QF = [A.get(4) for _ in range(8)]
    Q9F = [A.get(4) for _ in range(4)]
    NST = 8
    STG = [A.get(16, 4) for _ in range(NST)]

    sX, sK, sV, sW, sO = 20, 24, 28, 32, 36
    sWv, sB, sH = 40, 41, 42
    sT = 43
    sOff = 50
    sRet = 52
    sQs = 54
    ST = Stamps(P, stamps, sO, 60)
    srd = lambda b: f"s[{b}:{b+3}]"

    P(f"s_cmp_ge_u32 s2, 256\ns_cbranch_scc1 L_end_{name}")
    ST()
    P("s_load_dwordx8 s[4:11], s[0:1], 0")
    P("s_load_dwordx8 s[12:19], s[0:1], 32")
    P(f"v_lshrrev_b32 {v(T[0])}, 6, v0")
    P(f"v_and_b32 {v(vLane)}, 63, v0")
    P(f"v_readfirstlane_b32 s{sWv}, {v(T[0])}")
    lh = cfg.get("lh", 2)
    if lh == -1:
        P(f"s_and_b32 s{sH}, s2, 31\ns_lshr_b32 s{sB}, s2, 5")
    else:
        P(f"s_and_b32 s{sT}, s2, 7\ns_lshr_b32 s{sT+1}, s2, 3")
        P(f"s_and_b32 s{sH}, s{sT}, {(32>>lh)-1}\ns_lshl_b32 s{sH}, s{sH}, {lh}\ns_and_b32 s{sB}, s{sT+1}, {(1<<lh)-1}\ns_add_u32 s{sH}, s{sH}, s{sB}")
        P(f"s_lshr_b32 s{sB}, s{sT}, {5-lh}\ns_lshl_b32 s{sB}, s{sB}, {5-lh}\ns_lshr_b32 s{sT+1}, s{sT+1}, {lh}\ns_add_u32 s{sB}, s{sB}, s{sT+1}")
    P(f"s_lshl_b32 s{sT+2}, s{sB}, 5\ns_add_u32 s{sT+2}, s{sT+2}, s{sH}")
    l = v(vLane)
    P(f"v_and_b32 {v(T[1])}, 15, {l}\nv_lshrrev_b32 {v(T[2])}, 4, {l}\nv_lshrrev_b32 {v(T[3])}, 5, {l}")
    P(f"v_and_b32 {v(T[4])}, 31, {l}\nv_bfe_u32 {v(T[5])}, {l}, 2, 2\nv_and_b32 {v(T[6])}, 3, {l}")
    P(f"s_lshl_b32 s{sT+3}, s{sWv}, 12")
    P(f"v_lshlrev_b32 {v(vLd)}, 4, {l}\nv_add_u32 {v(vLd)}, s{sT+3}, {v(vLd)}")
    P.wait_all(vm=False)
    P(f"s_lshl_b32 s{sT+4}, s{sT+2}, 18")
    P(f"s_add_u32 s{sK}, s6, s{sT+4}\ns_addc_u32 s{sK+1}, s7, 0\ns_mov_b32 s{sK+2}, 0x40000\ns_mov_b32 s{sK+3}, 0x20000")
    P(f"s_add_u32 s{sV}, s8, s{sT+4}\ns_addc_u32 s{sV+1}, s9, 0\ns_mov_b32 s{sV+2}, 0x40000\ns_mov_b32 s{sV+3}, 0x20000")

    seq = [("K", 0)]
    for s_ in range(1, 16):
        seq += [("K", s_), ("V", s_ - 1)]
    seq += [("V", 15)]
    tidx = {t: i for i, t in enumerate(seq)}

    def kv_load_ins(i):
        kind, t = seq[i]
        base = STG[i % NST]
        out = [Ins(f"s_mov_b32 s{sOff}, {t*SLOT}")]
        for n in range(4):
            out.append(Ins(f"buffer_load_dwordx4 {a(base+4*n,4)}, {v(vLd)}, {srd(sK if kind=='K' else sV)}, s{sOff} offen offset:{n*1024}{kvflag}", tok=("kv", i)))
        return out

    def kv_write_ins(i):
        kind, t = seq[i]
        base = STG[i % NST]
        out = []
        for n in range(4):
            if kind == "K":
                out.append(Ins(f"ds_write_b128 {v(vKw[n])}, {a(base+4*n,4)} offset:{(t%3)*SLOT}", tok=("kvw", i)))
            else:
                out.append(Ins(f"ds_write_b128 {v(vVw[n&1])}, {a(base+4*n,4)} offset:{(t%3)*SLOT+1024*n}", tok=("kvw", i)))
        return out

    nxt = [0]
    def issue_kv(n):
        for _ in range(n):
            if nxt[0] < len(seq):
                for I in kv_load_ins(nxt[0]): P.add(I)
                nxt[0] += 1

    kvsched = cfg.get("kvsched", [2, 2, 2, 2, 0, 0])
    issue_kv(kvsched[0])

    P(f"s_mul_i32 s{sT+5}, s{sB}, 184320")
    P(f"s_add_u32 s{sX}, s4, s{sT+5}\ns_addc_u32 s{sX+1}, s5, 0\ns_mov_b32 s{sX+2}, 184320\ns_mov_b32 s{sX+3}, 0x20000")
    P(f"s_lshl_b32 s{sT+5}, s{sH}, 8")
    P(f"s_add_u32 s{sW}, s10, s{sT+5}\ns_addc_u32 s{sW+1}, s11, 0\ns_sub_u32 s{sW+2}, {640*8192}, s{sT+5}\ns_mov_b32 s{sW+3}, 0x20000")
    P(f"s_mul_i32 s{sT+5}, s{sWv}, 36")
    P(f"v_add_u32 {v(T[0])}, s{sT+5}, {v(T[2])}")
    P(f"v_mul_u32_u24 {v(T[0])}, 1280, {v(T[0])}")
    for j in range(4):
        P(f"s_add_u32 s{sT+6}, s{sWv}, {j}\ns_and_b32 s{sT+6}, s{sT+6}, 3\ns_lshl_b32 s{sT+6}, s{sT+6}, 2")
        P(f"v_add_u32 {v(T[7])}, s{sT+6}, {v(T[2])}")
        P(f"v_xor_b32 {v(T[7])}, {v(T[7])}, {v(T[1])}")
        P(f"v_lshl_add_u32 {v(vXd[j])}, {v(T[7])}, 4, {v(T[0])}")
        if j: P(f"v_add_u32 {v(vXd[j])}, {j*4096}, {v(vXd[j])}")
    P(f"s_lshl_b32 s{sT+5}, s{sWv}, 4")
    P(f"v_add_u32 {v(T[0])}, s{sT+5}, {v(T[2])}\nv_lshlrev_b32 {v(T[0])}, 13, {v(T[0])}")
    P(f"v_lshlrev_b32 {v(T[7])}, 2, {v(T[2])}\nv_xor_b32 {v(T[7])}, {v(T[7])}, {v(T[1])}")
    P(f"v_lshl_add_u32 {v(vWd[0])}, {v(T[7])}, 4, {v(T[0])}")
    for j in range(1, 4):
        P(f"v_add_u32 {v(vWd[j])}, {j*31744}, {v(vWd[0])}")
    P(f"s_mul_i32 s{sQs}, s{sWv}, 9216")
    P(f"s_lshl_b32 s{sQs+1}, s{sWv}, 12")

    def issue_sc(sc):
        base = QB if sc % 2 == 0 else QA
        for g in range(3):
            P(f"s_add_u32 m0, s{sQs}, {base + 4096*g}")
            P(f"s_mov_b32 s{sOff}, {20480*g + 256*sc}")
            for j in range(4 if g < 2 else 1):
                P(f"buffer_load_dwordx4 {v(vXd[j])}, {srd(sX)}, s{sOff} offen offset:{1024*j}{xwflag} lds", tok=("sc", sc))
        for half in range(2):
            P(f"s_add_u32 m0, s{sQs+1}, {base + XSZ + SLOT*half}")
            P(f"s_mov_b32 s{sOff}, {(2*sc+half)*524288}")
            for j in range(4):
                P(f"buffer_load_dwordx4 {v(vWd[j])}, {srd(sW)}, s{sOff} offen offset:{1024*j}{xwflag} lds", tok=("sc", sc))

    issue_sc(0)
    issue_sc(1)
    issue_kv(kvsched[1])

    P(f"s_mul_i32 s{sT+5}, s{sT+2}, {O_STRIDE}")
    if stamps:
        P(f"s_mov_b32 s56, s18\ns_mov_b32 s57, s19\ns_mov_b32 s58, 0x10000000\ns_mov_b32 s59, 0x20000")
    P(f"s_add_u32 s{sO}, s18, s{sT+5}\ns_addc_u32 s{sO+1}, s19, 0\ns_mov_b32 s{sO+2}, {O_STRIDE}\ns_mov_b32 s{sO+3}, 0x20000")

    l15, l4, hf, l31, rr, cc = (v(T[i]) for i in range(1, 7))
    t0, t7 = v(T[0]), v(T[7])
    for kk in range(8):
        P(f"v_add_u32 {t0}, {2*kk}, {hf}\nv_xor_b32 {t0}, {t0}, {l15}\nv_lshlrev_b32 {t0}, 4, {t0}")
        P(f"v_lshl_add_u32 {v(vKr[kk])}, {l31}, 8, {t0}")
    P(f"s_lshl_b32 s{sT+5}, s{sWv}, 13")
    for kk in range(8):
        for sl, base in ((0, QB), (1, QA)):
            P(f"s_add_u32 s{sT+6}, s{sT+5}, {base}")
            P(f"v_add_u32 {v(vXr[sl][kk])}, s{sT+6}, {v(vKr[kk])}")
    P(f"s_lshl_b32 s{sT+5}, s{sWv}, 12")
    for kk in range(4):
        P(f"v_add_u32 {t0}, {4*kk}, {l4}\nv_xor_b32 {t0}, {t0}, {l15}\nv_lshlrev_b32 {t0}, 4, {t0}")
        P(f"v_lshl_add_u32 {t0}, {l15}, 8, {t0}")
        P(f"v_add_u32 {v(vK9r[kk])}, s{sT+5}, {t0}")
        P(f"v_add_u32 {v(vX9r[0][kk])}, {QB+32768}, {t0}")
        P(f"v_add_u32 {v(vX9r[1][kk])}, {QA+32768}, {t0}")
    G2 = v(TM); tmp = v(T9)
    P(f"v_and_b32 {G2}, 1, {l4}\nv_lshlrev_b32 {G2}, 1, {G2}")
    P(f"v_lshrrev_b32 {t0}, 1, {cc}\nv_add_u32 {t0}, {t0}, {G2}")
    P(f"v_lshlrev_b32 {t7}, 2, {rr}\nv_xor_b32 {t0}, {t0}, {t7}")
    P(f"v_lshlrev_b32 {t7}, 1, {hf}\nv_xor_b32 {t0}, {t0}, {t7}")
    P(f"v_lshl_add_u32 {t7}, {hf}, 2, {rr}\nv_lshlrev_b32 {t7}, 8, {t7}")
    P(f"v_and_b32 {tmp}, 1, {cc}\nv_lshl_add_u32 {t7}, {tmp}, 3, {t7}\nv_add_u32 {t7}, {VBASE}, {t7}")
    for dt in range(4):
        P(f"v_xor_b32 {tmp}, {4*dt}, {t0}\nv_lshl_add_u32 {v(vVr[dt])}, {tmp}, 4, {t7}")
    P(f"v_and_b32 {t0}, 1, {cc}\nv_add_u32 {t0}, {t0}, {G2}")
    P(f"v_lshlrev_b32 {t7}, 2, {rr}\nv_xor_b32 {t0}, {t0}, {t7}")
    P(f"v_lshl_add_u32 {t7}, {hf}, 3, {rr}\nv_lshlrev_b32 {t7}, 8, {t7}")
    P(f"v_lshrrev_b32 {tmp}, 1, {cc}\nv_lshl_add_u32 {t7}, {tmp}, 3, {t7}")
    for dt in range(4):
        P(f"v_xor_b32 {tmp}, {4*dt}, {t0}\nv_lshl_add_u32 {tmp}, {tmp}, 4, {t7}")
        P(f"v_add_u32 {v(vWr[0][dt])}, {QB+XSZ}, {tmp}\nv_add_u32 {v(vWr[1][dt])}, {QA+XSZ}, {tmp}")
    P(f"s_lshl_b32 s{sT+5}, s{sWv}, 2")
    P(f"v_add_u32 {t0}, s{sT+5}, {cc}\nv_lshlrev_b32 {t7}, 2, {rr}\nv_xor_b32 {t0}, {t0}, {t7}\nv_lshlrev_b32 {t0}, 4, {t0}")
    P(f"v_lshl_add_u32 {t7}, {l4}, 3, {rr}\nv_lshl_add_u32 {t0}, {t7}, 8, {t0}")
    P(f"v_add_u32 {v(vW9r[0])}, {QB+XSZ}, {t0}\nv_add_u32 {v(vW9r[1])}, {QA+XSZ}, {t0}")
    P(f"v_lshrrev_b32 {t0}, 1, {cc}\nv_lshlrev_b32 {t7}, 2, {rr}\nv_xor_b32 {t0}, {t0}, {t7}\nv_xor_b32 {t0}, {t0}, {G2}")
    P(f"v_lshl_add_u32 {t7}, {l4}, 2, {rr}\nv_lshlrev_b32 {t7}, 8, {t7}")
    P(f"v_and_b32 {tmp}, 1, {cc}\nv_lshl_add_u32 {t7}, {tmp}, 3, {t7}")
    P(f"s_lshl_b32 s{sT+5}, s{sWv}, 12\ns_add_u32 s{sT+5}, s{sT+5}, {VBASE}")
    P(f"v_add_u32 {t7}, s{sT+5}, {t7}")
    for d in range(8):
        P(f"v_xor_b32 {tmp}, {2*d}, {t0}\nv_lshl_add_u32 {v(vV9r[d])}, {tmp}, 4, {t7}")
    P(f"s_lshl_b32 s{sT+5}, s{sWv}, 12")
    P(f"v_lshlrev_b32 {t7}, 8, {l4}\nv_add_u32 {t7}, s{sT+5}, {t7}")
    for n in range(4):
        P(f"v_add_u32 {t0}, {4*n}, {l4}\nv_xor_b32 {t0}, {t0}, {l15}\nv_lshl_add_u32 {t0}, {t0}, 4, {t7}")
        P(f"v_add_u32 {v(vKw[n])}, {KBASE+1024*n}, {t0}")
    P(f"v_lshlrev_b32 {t0}, 2, {l4}\nv_xor_b32 {t0}, {t0}, {l15}")
    for n in range(2):
        P(f"v_xor_b32 {tmp}, {2*n}, {t0}\nv_lshl_add_u32 {tmp}, {tmp}, 4, {t7}\nv_add_u32 {v(vVw[n])}, {VBASE}, {tmp}")

    def merge(mf, fill):
        fill = sorted(fill, key=lambda x: (x[0], x[1]))
        k = 0
        def emit_upto(g):
            nonlocal k
            while k < len(fill) and fill[k][0] <= g:
                it = fill[k][2]
                if isinstance(it, Ins): P.add(it)
                else: it()
                k += 1
        emit_upto(-1)
        for i, (pre, I) in enumerate(mf):
            if pre: P.wait_regs(pre)
            P.add(I)
            emit_upto(i)
        emit_upto(10 ** 9)

    frc = [0]
    def qstep(sc):
        sl = sc % 2
        mf = []; fill = []; sq = [0]
        def F(g, it):
            fill.append((g, sq[0], it)); sq[0] += 1
        for kk in range(8):
            half, k4 = kk // 4, kk % 4
            fb = FB[kk % 3]
            j0 = len(mf)
            F(j0 - LEAD - 1, Ins(f"ds_read_b128 {a(fb,4)}, {v(vXr[sl][kk])}"))
            for dt in range(4):
                fr = FR[frc[0] % NFR]; frc[0] += 1
                j = len(mf)
                for rd in range(2):
                    F(j - LEAD - 1, Ins(f"ds_read_b64_tr_b16 {a(fr+2*rd,2)}, {v(vWr[sl][dt])} offset:{half*SLOT + (16*k4+4*rd)*256}"))
                c = "0" if (sc == 0 and kk == 0) else v(O + 16*dt, 16)
                mf.append(([a(fr, 4), a(fb, 4)], Ins(f"v_mfma_f32_32x32x16_bf16 {v(O+16*dt,16)}, {a(fr,4)}, {a(fb,4)}, {c}")))
            if kk % 2 == 1:
                k32 = kk // 2
                j = len(mf)
                xb = F9[2 + (k32 % 2)]
                F(j - LEAD - 3, Ins(f"ds_read_b128 {a(xb,4)}, {v(vX9r[sl][k32])}"))
                for Tt in range(2):
                    fr = F9[Tt]
                    for rd in range(2):
                        F(j - LEAD - 2 + Tt, Ins(f"ds_read_b64_tr_b16 {a(fr+2*rd,2)}, {v(vW9r[sl])} offset:{(k32//2)*SLOT + (32*(k32%2)+4*rd)*256 + 8*Tt}"))
                for Tt in range(2):
                    fr = F9[Tt]
                    c = "0" if (sc == 0 and k32 == 0) else v(O9 + 4*Tt, 4)
                    mf.append(([a(fr, 4), a(xb, 4)], Ins(f"v_mfma_f32_16x16x32_bf16 {v(O9+4*Tt,4)}, {a(fr,4)}, {a(xb,4)}, {c}")))
        fill[:] = [(max(g, -1), s_, it) for g, s_, it in fill]
        return mf, fill, F

    for sc in range(5):
        P.comment(f"---- qproj step {sc}")
        P.wait_tok(("sc", sc))
        P("s_barrier")
        if sc == 0 or sc == 4: ST()
        if 1 <= sc <= 3:
            issue_sc(sc + 1)
        issue_kv(kvsched[1 + sc] if sc >= 1 else 0)
        mf, fill, F = qstep(sc)
        if sc == 4:
            F(20, lambda: P.wait_tok(("kv", 0)))
            for n, I in enumerate(kv_write_ins(0)):
                F(21 + n, I)
        merge(mf, fill)
        P.wait_all(vm=False)

    P(f"s_mov_b32 s{sT}, {f2u(QSCALE):#x}")
    for i in range(8):
        P(f"v_mul_f32 {v(O9+i)}, s{sT}, {v(O9+i)}")
    for i in range(4):
        P(f"v_cvt_pk_bf16_f32 {v(S[0]+i)}, {v(O9+2*i)}, {v(O9+2*i+1)}")
    P(f"s_lshl_b32 s{sT+1}, s{sWv}, 10\ns_add_u32 s{sT+1}, s{sT+1}, {Q9X}")
    P(f"v_lshlrev_b32 {t0}, 4, {l}\nv_add_u32 {t7}, s{sT+1}, {t0}\nv_add_u32 {t0}, {Q9X}, {t0}")
    P(f"ds_write_b128 {t7}, {v(S[0],4)}")
    for i in range(64):
        P(f"v_mul_f32 {v(O+i)}, s{sT}, {v(O+i)}")
    P.wait_all(vm=False)
    P("s_barrier")
    issue_kv(1)
    for kk in range(4):
        P(f"ds_read_b128 {a(Q9F[kk],4)}, {t0} offset:{1024*kk}")
    for i in range(32):
        tr = v(T[1 + (i % 4)])
        P(f"v_cvt_pk_bf16_f32 {tr}, {v(O+2*i)}, {v(O+2*i+1)}")
        P(f"v_accvgpr_write_b32 {a(QF[i//4] + i % 4)}, {tr}")
    ST()

    mf = []; fill = []; sq = [0]
    def F(g, it):
        fill.append((g, sq[0], it)); sq[0] += 1

    def spread(items, g0, g1):
        tot = sum(c for c, _ in items)
        acc = 0
        for c, it in items:
            g = g0 + int((acc + 0.5 * c) * (g1 - g0 + 1) / tot)
            F(min(g, g1), it)
            acc += c

    def maxchain(dst, base, n):
        out = []
        if n == 16:
            out.append(Ins(f"v_max3_f32 {v(dst)}, {v(base)}, {v(base+1)}, {v(base+2)}"))
            for i in range(3, 15, 2):
                out.append(Ins(f"v_max3_f32 {v(dst)}, {v(dst)}, {v(base+i)}, {v(base+i+1)}"))
            out.append(Ins(f"v_max_f32 {v(dst)}, {v(dst)}, {v(base+15)}"))
        else:
            out.append(Ins(f"v_max3_f32 {v(dst)}, {v(base)}, {v(base+1)}, {v(base+2)}"))
            out.append(Ins(f"v_max_f32 {v(dst)}, {v(dst)}, {v(base+3)}"))
        return out

    def init_main():
        for I in maxchain(TM, S[0], 16): P.add(I)
        P(f"v_mov_b32 {t0}, {v(TM)}")
        P(f"v_permlane32_swap_b32 {v(TM)}, {t0}")
        P(f"v_max_f32 {v(TM)}, {v(TM)}, {t0}\nv_ceil_f32 {v(TM)}, {v(TM)}")
        for i in range(16): P(f"v_sub_f32 {v(NEGM+i)}, 0, {v(TM)}")
        for i in range(16): P(f"v_sub_f32 {v(S[0]+i)}, {v(S[0]+i)}, {v(TM)}")
        for I in maxchain(T9, S9, 4): P.add(I)
        P(f"v_mov_b32 {t0}, {v(T9)}")
        P(f"v_permlane16_swap_b32 {v(T9)}, {t0}")
        P(f"v_max_f32 {v(T9)}, {v(T9)}, {t0}\nv_mov_b32 {t0}, {v(T9)}")
        P(f"v_permlane32_swap_b32 {v(T9)}, {t0}")
        P(f"v_max_f32 {v(T9)}, {v(T9)}, {t0}\nv_ceil_f32 {v(T9)}, {v(T9)}")
        for i in range(4): P(f"v_sub_f32 {v(NEGM9+i)}, 0, {v(T9)}")
        for i in range(4): P(f"v_sub_f32 {v(S9+i)}, {v(S9+i)}, {v(T9)}")
        P(f"v_mov_b32 {v(L)}, 0\nv_mov_b32 {v(L9)}, 0")

    bar_gap = {}
    bar_gap[-1] = -1
    for u in range(-1, 33):
        odd = (u % 2 != 0)
        s_ = (u + 1) // 2
        g0 = len(mf)
        minr = bar_gap[s_ - 1]
        has_qk = u + 1 <= 31
        has_pv = 0 <= u - 1 <= 31
        has_sm = 0 <= u <= 31
        qk_last = None
        if has_qk:
            un = u + 1
            sb = S[un & 1]
            for kk in range(8):
                fr = FR[frc[0] % NFR]; frc[0] += 1
                j = len(mf)
                F(max(j - LEAD - 1, minr), Ins(f"ds_read_b128 {a(fr,4)}, {v(vKr[kk])} offset:{(s_%3)*SLOT + (un&1)*8192}"))
                c = (v(sb, 16) if kk else ("0" if un == 0 else v(NEGM, 16)))
                mf.append(([a(fr, 4)], Ins(f"v_mfma_f32_32x32x16_bf16 {v(sb,16)}, {a(fr,4)}, {a(QF[kk],4)}, {c}")))
            qk_last = len(mf) - 1
            if odd:
                for kk in range(4):
                    j = len(mf)
                    F(max(j - LEAD - 3, minr), Ins(f"ds_read_b128 {a(F9[kk],4)}, {v(vK9r[kk])} offset:{(s_%3)*SLOT}"))
                    c = (v(S9, 4) if kk else ("0" if un == 0 else v(NEGM9, 4)))
                    mf.append(([a(F9[kk], 4)], Ins(f"v_mfma_f32_16x16x32_bf16 {v(S9,4)}, {a(F9[kk],4)}, {a(Q9F[kk],4)}, {c}")))
        pv0 = len(mf)
        if has_pv:
            un = u - 1
            tv = un // 2
            pb = PB[un & 1]
            for ks in range(2):
                for dt in range(4):
                    fr = FR[frc[0] % NFR]; frc[0] += 1
                    j = len(mf)
                    for rd in range(2):
                        F(max(j - LEAD - 1, minr), Ins(f"ds_read_b64_tr_b16 {a(fr+2*rd,2)}, {v(vVr[dt])} offset:{(tv%3)*SLOT + (32*(un&1)+16*ks+8*rd)*256}"))
                    c = "0" if (un == 0 and ks == 0) else v(O + 16*dt, 16)
                    mf.append(([a(fr, 4)], Ins(f"v_mfma_f32_32x32x16_bf16 {v(O+16*dt,16)}, {a(fr,4)}, {v(pb+4*ks,4)}, {c}")))
            if odd:
                for d in range(8):
                    j = len(mf)
                    F(max(j - LEAD - 5, minr), Ins(f"ds_read_b64_tr_b16 {a(FV9[d],2)}, {v(vV9r[d])} offset:{(tv%3)*SLOT}"))
                    c = "0" if tv == 0 else v(O9 + 4*d, 4)
                    mf.append(([a(FV9[d], 2)], Ins(f"v_mfma_f32_16x16x16_bf16 {v(O9+4*d,4)}, {a(FV9[d],2)}, {v(P9,2)}, {c}")))
        g1 = len(mf) - 1
        items = []
        if has_sm:
            sb = S[u & 1]; pb = PB[u & 1]
            for i in range(0, 16, 2):
                items.append((2, Ins(f"v_exp_f32 {v(sb+i)}, {v(sb+i)}")))
                items.append((2, Ins(f"v_exp_f32 {v(sb+i+1)}, {v(sb+i+1)}")))
                items.append((1, Ins(f"v_add_f32 {v(L)}, {v(L)}, {v(sb+i)}")))
                items.append((1, Ins(f"v_cvt_pk_bf16_f32 {v(pb+i//2)}, {v(sb+i)}, {v(sb+i+1)}")))
                items.append((1, Ins(f"v_add_f32 {v(L)}, {v(L)}, {v(sb+i+1)}")))
            if not odd:
                for i in range(0, 4, 2):
                    items.append((2, Ins(f"v_exp_f32 {v(S9+i)}, {v(S9+i)}")))
                    items.append((2, Ins(f"v_exp_f32 {v(S9+i+1)}, {v(S9+i+1)}")))
                    items.append((1, Ins(f"v_add_f32 {v(L9)}, {v(L9)}, {v(S9+i)}")))
                    items.append((1, Ins(f"v_cvt_pk_bf16_f32 {v(P9+i//2)}, {v(S9+i)}, {v(S9+i+1)}")))
                    items.append((1, Ins(f"v_add_f32 {v(L9)}, {v(L9)}, {v(S9+i+1)}")))
            spread(items, g0, max(g0, g1 - 3))
        if not odd and s_ + 1 <= 16:
            tl = []
            if s_ + 1 <= 15: tl.append(tidx[("K", s_ + 1)])
            tl.append(tidx[("V", s_)])
            gw = g0 + 1
            F(gw, (lambda tl=tl: P.wait_tok(("kv", tl[-1]))))
            k = 0
            for i in tl:
                for I in kv_write_ins(i):
                    F(gw + 1 + k // 2, I); k += 1
            gb = min(gw + 1 + k // 2 + 2, g1 - 1)
            F(gb, (lambda tl=tl: (P.wait_tok(("kvw", tl[-1])), P("s_barrier"))))
            bar_gap[s_] = gb
            k = 0
            for i in tl:
                if nxt[0] < len(seq):
                    for I in kv_load_ins(nxt[0]):
                        F(min(gb + 1 + k // 2, g1), I); k += 1
                    nxt[0] += 1
        if has_qk:
            if u == -1:
                F(g1, init_main)
            else:
                mc = maxchain(TM, S[(u + 1) & 1], 16)
                if odd:
                    mc += maxchain(T9, S9, 4)
                    mc.append(Ins(f"v_max_f32 {t0}, {v(TM)}, {v(T9)}"))
                    mc.append(Ins(f"v_cmp_lt_f32 vcc, {f2u(THR):#x}, {t0}"))
                else:
                    mc.append(Ins(f"v_cmp_lt_f32 vcc, {f2u(THR):#x}, {v(TM)}"))
                gs = min(pv0 + 2, g1)
                spread([(1, I) for I in mc], gs, g1)
                lab = f"L_ok_{name}_{u}"
                F(g1, Ins(f"s_cbranch_vccz {lab}"))
                F(g1, Ins(f"s_call_b64 s[{sRet}:{sRet+1}], L_rare{'A' if odd else 'B'}_{name}"))
                F(g1, Ins(f"{lab}:"))
    mf2 = []
    for i, (pre, I) in enumerate(mf):
        if i % 2 == 0 and i + 1 < len(mf):
            mf2.append((pre + mf[i + 1][0], I))
        else:
            mf2.append((pre, I))
    abl = cfg.get("abl", "")
    def keep(it):
        if not isinstance(it, Ins):
            return "B" not in abl
        if "V" in abl and it.kind == "valu" and not it.op.startswith("v_cmp"): return False
        if "E" in abl and it.op == "v_exp_f32": return False
        if "R" in abl and it.op.startswith("ds_read"): return False
        if "T" in abl and it.op.startswith("ds_read_b64_tr"): return False
        if "W" in abl and it.op.startswith("ds_write"): return False
        if "G" in abl and it.kind == "vmem": return False
        if "C" in abl and (it.op.startswith("s_cbranch") or it.op.startswith("s_call") or it.op.startswith("v_cmp")): return False
        return True
    fill = [f for f in fill if keep(f[2])]
    if "M" in abl:
        mf2 = [(pre, Ins("s_nop 0")) for pre, I in mf2]
    if "9" in abl:
        mf2 = [(pre, Ins("s_nop 0") if "16x16" in I.op else I) for pre, I in mf2]
    merge(mf2, fill)
    ST()

    P(f"v_mov_b32 {t0}, {v(L9)}")
    P(f"v_permlane16_swap_b32 {v(L9)}, {t0}")
    P(f"v_add_f32 {v(L9)}, {v(L9)}, {t0}\nv_mov_b32 {t0}, {v(L9)}")
    P(f"v_permlane32_swap_b32 {v(L9)}, {t0}")
    P(f"v_add_f32 {v(NEGM9+1)}, {v(L9)}, {t0}")
    P(f"s_mul_i32 s{sT}, s{sWv}, 8704\ns_add_u32 s{sT}, s{sT}, {MRG}")
    P(f"v_lshlrev_b32 {t7}, 4, {l}\nv_add_u32 {t0}, s{sT}, {t7}")
    for d in range(8):
        P(f"ds_write_b128 {t0}, {v(O9+4*d,4)} offset:{1024*d}")
    P(f"v_lshlrev_b32 {v(T[1])}, 3, {l}\nv_add_u32 {v(T[2])}, s{sT}, {v(T[1])}")
    P(f"ds_write_b64 {v(T[2])}, {v(NEGM9,2)} offset:8192")
    P(f"v_mov_b32 {t0}, {v(L)}")
    P(f"v_permlane32_swap_b32 {v(L)}, {t0}")
    P(f"v_add_f32 {v(L)}, {v(L)}, {t0}\nv_rcp_f32 {v(L)}, {v(L)}")
    P.wait_all(vm=False)
    P("s_barrier")
    P(f"v_add_u32 {v(T[1])}, {MRG}, {v(T[1])}")
    P(f"s_lshl_b32 s{sT}, s{sWv}, 11\ns_add_u32 s{sT}, s{sT}, {MRG}")
    P(f"v_add_u32 {v(T[2])}, s{sT}, {t7}")
    for w in range(4):
        P(f"ds_read_b64 {v(S[1]+2*w,2)}, {v(T[1])} offset:{8704*w+8192}")
    dreg = lambda w, t: (S[0] if w < 2 else NEGM) + 8 * (w % 2) + 4 * t
    for w in range(4):
        for t in range(2):
            P(f"ds_read_b128 {v(dreg(w,t),4)}, {v(T[2])} offset:{8704*w+1024*t}")
    P(f"s_lshl_b32 s{sT}, s{sWv}, 13")
    P(f"v_add_u32 {v(T[3])}, s{sT}, {t7}")
    for fragi in range(8):
        b0 = O + 8 * fragi
        for i in range(8):
            P(f"v_mul_f32 {v(b0+i)}, {v(b0+i)}, {v(L)}")
        for i in range(4):
            P(f"v_cvt_pk_bf16_f32 {v(b0+i)}, {v(b0+2*i)}, {v(b0+2*i+1)}")
        if fragi < 4:
            P(f"buffer_store_dwordx4 {v(b0,4)}, {v(T[3])}, {srd(sO)}, 0 offen offset:{1024*fragi}{oflag}")
        else:
            if fragi == 4: P(f"v_add_u32 {v(T[4])}, 4096, {v(T[3])}")
            P(f"buffer_store_dwordx4 {v(b0,4)}, {v(T[4])}, {srd(sO)}, 0 offen offset:{1024*(fragi-4)}{oflag}")
    s1 = S[1]
    P(f"v_min3_f32 {t0}, {v(s1)}, {v(s1+2)}, {v(s1+4)}\nv_min_f32 {t0}, {t0}, {v(s1+6)}")
    for w in range(4):
        P(f"v_sub_f32 {v(s1+2*w)}, {t0}, {v(s1+2*w)}")
    for w in range(4):
        P(f"v_exp_f32 {v(s1+2*w)}, {v(s1+2*w)}")
    P(f"v_mul_f32 {t0}, {v(s1)}, {v(s1+1)}")
    for w in range(1, 4):
        P(f"v_fmac_f32 {t0}, {v(s1+2*w)}, {v(s1+2*w+1)}")
    P(f"v_rcp_f32 {t0}, {t0}")
    for w in range(4):
        P(f"v_mul_f32 {v(s1+2*w)}, {v(s1+2*w)}, {t0}")
    for i in range(8):
        P(f"v_mul_f32 {v(O9+i)}, {v(dreg(0,0)+i)}, {v(s1)}")
        for w in range(1, 4):
            P(f"v_fmac_f32 {v(O9+i)}, {v(dreg(w,0)+i)}, {v(s1+2*w)}")
    for i in range(4):
        P(f"v_cvt_pk_bf16_f32 {v(O9+8+i)}, {v(O9+2*i)}, {v(O9+2*i+1)}")
    P(f"s_lshl_b32 s{sT}, s{sWv}, 10\ns_add_u32 s{sT}, s{sT}, 32768")
    P(f"v_add_u32 {v(T[3])}, s{sT}, {t7}")
    P(f"buffer_store_dwordx4 {v(O9+8,4)}, {v(T[3])}, {srd(sO)}, 0 offen{oflag}")
    if stamps:
        P.wait_all()
        ST()
        P(f"s_lshl_b32 s{sT}, s2, 7\ns_add_u32 s{sT}, s{sT}, 0x8000000")
        P(f"v_lshlrev_b32 {t0}, 2, v0\nv_add_u32 {t0}, s{sT}, {t0}")
        P(f"v_mov_b32 {t7}, 0")
        for i in range(2 * ST.n):
            P(f"v_writelane_b32 {t7}, s{60+i}, {i}")
        P(f"v_cmp_gt_u32 vcc, {2*ST.n}, v0")
        P(f"s_and_saveexec_b64 s[{sT}:{sT+1}], vcc" if sT % 2 == 0 else f"s_and_saveexec_b64 s[{sT+1}:{sT+2}], vcc")
        P(f"s_cbranch_execz L_end_{name}")
        P(f"buffer_store_dword {t7}, {t0}, s[56:59], 0 offen")
    P(f"L_end_{name}:\ns_endpgm")

    def rare(lab, sb, pb, with9):
        P(f"{lab}:")
        P.fence()
        P(f"v_mov_b32 {t0}, {v(TM)}")
        P(f"v_permlane32_swap_b32 {v(TM)}, {t0}")
        P(f"v_max_f32 {v(TM)}, {v(TM)}, {t0}\nv_ceil_f32 {v(TM)}, {v(TM)}\nv_max_f32 {v(TM)}, 0, {v(TM)}")
        P(f"v_exp_f32 {t0}, -{v(TM)}")
        for i in range(16): P(f"v_sub_f32 {v(sb+i)}, {v(sb+i)}, {v(TM)}")
        for i in range(16): P(f"v_sub_f32 {v(NEGM+i)}, {v(NEGM+i)}, {v(TM)}")
        P(f"v_mul_f32 {v(L)}, {v(L)}, {t0}")
        for i in range(64): P(f"v_mul_f32 {v(O+i)}, {v(O+i)}, {t0}")
        for i in range(8):
            P(f"v_lshlrev_b32 {v(T[1])}, 16, {v(pb+i)}\nv_and_b32 {v(T[2])}, 0xffff0000, {v(pb+i)}")
            P(f"v_mul_f32 {v(T[1])}, {v(T[1])}, {t0}\nv_mul_f32 {v(T[2])}, {v(T[2])}, {t0}")
            P(f"v_cvt_pk_bf16_f32 {v(pb+i)}, {v(T[1])}, {v(T[2])}")
        if with9:
            P(f"v_mov_b32 {t0}, {v(T9)}")
            P(f"v_permlane16_swap_b32 {v(T9)}, {t0}")
            P(f"v_max_f32 {v(T9)}, {v(T9)}, {t0}\nv_mov_b32 {t0}, {v(T9)}")
            P(f"v_permlane32_swap_b32 {v(T9)}, {t0}")
            P(f"v_max_f32 {v(T9)}, {v(T9)}, {t0}\nv_ceil_f32 {v(T9)}, {v(T9)}\nv_max_f32 {v(T9)}, 0, {v(T9)}")
            P(f"v_exp_f32 {t0}, -{v(T9)}")
            for i in range(4): P(f"v_sub_f32 {v(S9+i)}, {v(S9+i)}, {v(T9)}")
            for i in range(4): P(f"v_sub_f32 {v(NEGM9+i)}, {v(NEGM9+i)}, {v(T9)}")
            P(f"v_mul_f32 {v(L9)}, {v(L9)}, {t0}")
            for i in range(32): P(f"v_mul_f32 {v(O9+i)}, {v(O9+i)}, {t0}")
        P("s_nop 3")
        P(f"s_setpc_b64 s[{sRet}:{sRet+1}]")
    rare(f"L_rareA_{name}", S[0], PB[1], True)
    rare(f"L_rareB_{name}", S[1], PB[0], False)

    st = {}
    body = P.render(st)
    print(f"{name}: vgpr {V.hi} agpr {A.hi} stats {st}")
    return kernel_head(name) + body + kernel_desc(name, 512, 100, 256)
```

```python
from asmlib import *
from k1 import O_STRIDE, Stamps

PART = 16 << 20
PSTRIDE = 94208

def stamp_out(P, ST, name, slot0, t0, t7):
    P.wait_all()
    ST()
    P(f"s_lshl_b32 s44, s2, 8\ns_add_u32 s44, s44, {0x8000000 + slot0*8}")
    P(f"v_lshlrev_b32 {t0}, 2, v0\nv_add_u32 {t0}, s44, {t0}")
    P(f"v_mov_b32 {t7}, 0")
    for i in range(2 * ST.n):
        P(f"v_writelane_b32 {t7}, s{60+i}, {i}")
    P(f"v_cmp_gt_u32 vcc, {2*ST.n}, v0")
    P(f"s_and_saveexec_b64 s[44:45], vcc")
    P(f"s_cbranch_execz L_end_{name}")
    P(f"buffer_store_dword {t7}, {t0}, s[56:59], 0 offen")

def gen_k2(name="oproj_kernel", stamps=False, cfg=None):
    cfg = cfg or {}
    LEAD = 4
    P = Prog()
    V = Alloc("v", 1, 256); A = Alloc("a", 0, 256)
    v = lambda b, n=1: rng("v", b, n)
    a = lambda b, n=1: rng("a", b, n)
    ACC = V.get(80, 16); ACC9 = V.get(12, 4)
    T = [V.get() for _ in range(8)]
    vD = [V.get() for _ in range(5)]
    vR = [V.get() for _ in range(3)]
    vR9 = [V.get() for _ in range(3)]
    vO = V.get(); vO9 = V.get(); vL = V.get()
    FR = [V.get(4) for _ in range(8)]
    F9 = [V.get(4) for _ in range(4)]
    OF = [A.get(4) for _ in range(32)]
    O9F = [A.get(4) for _ in range(16)]
    sW, sO, sP = 20, 24, 28
    srd = lambda b: f"s[{b}:{b+3}]"
    ST = Stamps(P, stamps, 0, 60)
    P(f"s_cmp_ge_u32 s2, 256\ns_cbranch_scc1 L_end_{name}")
    ST()
    P("s_load_dwordx8 s[12:19], s[0:1], 32")
    P(f"v_lshrrev_b32 {v(T[0])}, 6, v0\nv_and_b32 {v(vL)}, 63, v0")
    P(f"v_readfirstlane_b32 s40, {v(T[0])}")
    P("s_and_b32 s41, s2, 7\ns_lshr_b32 s42, s2, 5\ns_bfe_u32 s43, s2, 0x20003")
    l = v(vL)
    P("s_lshl_b32 s44, s40, 13")
    P(f"v_lshlrev_b32 {v(vO9)}, 4, {l}\nv_add_u32 {v(vO)}, s44, {v(vO9)}\nv_add_u32 {v(vO9)}, 32768, {v(vO9)}")
    P.wait_all(vm=False)
    P(f"s_lshl_b32 s44, s42, 5\ns_lshl_b32 s45, s41, 2\ns_add_u32 s44, s44, s45\ns_mul_i32 s44, s44, {O_STRIDE}")
    P(f"s_add_u32 s{sO}, s18, s44\ns_addc_u32 s{sO+1}, s19, 0\ns_mov_b32 s{sO+2}, {4*O_STRIDE}\ns_mov_b32 s{sO+3}, 0x20000")
    P(f"s_mul_i32 s44, s41, {512*1280}\ns_mul_i32 s45, s43, 320\ns_add_u32 s44, s44, s45")
    P(f"s_add_u32 s{sW}, s12, s44\ns_addc_u32 s{sW+1}, s13, 0\ns_mov_b32 s{sW+2}, {511*1280+320}\ns_mov_b32 s{sW+3}, 0x20000")
    P(f"s_lshl_b32 s44, s42, 2\ns_add_u32 s44, s44, s43\ns_lshl_b32 s44, s44, 3\ns_add_u32 s44, s44, s41\ns_mul_i32 s44, s44, {PSTRIDE}\ns_add_u32 s44, s44, {PART}")
    P(f"s_add_u32 s{sP}, s18, s44\ns_addc_u32 s{sP+1}, s19, 0\ns_mov_b32 s{sP+2}, {PSTRIDE}\ns_mov_b32 s{sP+3}, 0x20000")
    if stamps:
        P(f"s_mov_b32 s56, s18\ns_mov_b32 s57, s19\ns_mov_b32 s58, 0x10000000\ns_mov_b32 s59, 0x20000")
    for j in range(5):
        P(f"v_add_u32 {v(T[0])}, {64*j}, {l}")
        P(f"v_mul_u32_u24 {v(T[1])}, 3277, {v(T[0])}\nv_lshrrev_b32 {v(T[1])}, 16, {v(T[1])}")
        P(f"v_mul_u32_u24 {v(T[2])}, 20, {v(T[1])}\nv_sub_u32 {v(T[2])}, {v(T[0])}, {v(T[2])}")
        P(f"v_mul_u32_u24 {v(T[1])}, 1280, {v(T[1])}\nv_lshl_add_u32 {v(vD[j])}, {v(T[2])}, 4, {v(T[1])}")
        if j % 4: P(f"v_subrev_u32 {v(vD[j])}, {1024*(j%4)}, {v(vD[j])}")
    P("s_mul_i32 s46, s40, 10240")
    P(f"s_mul_i32 s47, s40, {32*1280}")
    def issue_head(hh):
        P(f"s_mov_b32 s50, {hh*O_STRIDE}")
        for u in range(8):
            if u == 4: P(f"s_mov_b32 s50, {hh*O_STRIDE+4096}")
            P(f"buffer_load_dwordx4 {a(OF[8*hh+u],4)}, {v(vO)}, {srd(sO)}, s50 offen offset:{1024*(u%4)}")
        P(f"s_mov_b32 s50, {hh*O_STRIDE}")
        for u in range(4):
            P(f"buffer_load_dwordx4 {a(O9F[4*hh+u],4)}, {v(vO9)}, {srd(sO)}, s50 offen offset:{1024*u}")
        for gg in range(2):
            P(f"s_add_u32 s50, s47, {(128*hh+16*gg)*1280}")
            P(f"s_add_u32 m0, s46, {hh*40960+gg*5120}")
            for j in range(4):
                P(f"buffer_load_dwordx4 {v(vD[j])}, {srd(sW)}, s50 offen offset:{1024*j} lds", tok=("w", hh))
            P(f"s_add_u32 m0, s46, {hh*40960+gg*5120+4096}")
            P(f"s_nop 0")
            P(f"buffer_load_dwordx4 {v(vD[4])}, {srd(sW)}, s50 offen lds", tok=("w", hh))
    issue_head(0); issue_head(1)
    P(f"v_lshrrev_b32 {v(T[0])}, 5, {l}\nv_bfe_u32 {v(T[1])}, {l}, 2, 2\nv_lshl_add_u32 {v(T[0])}, {v(T[0])}, 2, {v(T[1])}")
    P(f"v_mul_u32_u24 {v(T[0])}, 320, {v(T[0])}")
    P(f"v_bfe_u32 {v(T[2])}, {l}, 4, 1\nv_lshl_add_u32 {v(T[0])}, {v(T[2])}, 5, {v(T[0])}")
    P(f"v_and_b32 {v(T[2])}, 3, {l}\nv_lshl_add_u32 {v(vR[0])}, {v(T[2])}, 3, {v(T[0])}")
    P(f"v_add_u32 {v(vR[1])}, 61440, {v(vR[0])}\nv_add_u32 {v(vR[2])}, 122880, {v(vR[0])}")
    P(f"v_lshrrev_b32 {v(T[0])}, 4, {l}\nv_lshl_add_u32 {v(T[0])}, {v(T[0])}, 2, {v(T[1])}\nv_mul_u32_u24 {v(T[0])}, 320, {v(T[0])}")
    P(f"v_lshl_add_u32 {v(T[0])}, {v(T[2])}, 3, {v(T[0])}")
    P(f"s_lshl_b32 s44, s40, 5\nv_add_u32 {v(vR9[0])}, s44, {v(T[0])}")
    P(f"v_add_u32 {v(vR9[1])}, 61440, {v(vR9[0])}\nv_add_u32 {v(vR9[2])}, 122880, {v(vR9[0])}")
    issue_head(2); issue_head(3)
    frc = 0; f9c = 0
    for hh in range(4):
        P.wait_tok(("w", hh))
        P("s_barrier")
        if hh == 0: ST()
        mf = []; fill = []
        for u in range(8):
            for nt in range(5):
                fr = FR[frc % 8]; frc += 1
                j = len(mf)
                for rd in range(2):
                    row = 128*hh + 16*u + 8*rd
                    wn = row // 192
                    fill.append((max(j-LEAD-1, -1), Ins(f"ds_read_b64_tr_b16 {v(fr+2*rd,2)}, {v(vR[wn])} offset:{(row-192*wn)*320 + 64*nt}")))
                c = "0" if (hh == 0 and u == 0) else v(ACC+16*nt, 16)
                mf.append(Ins(f"v_mfma_f32_32x32x16_bf16 {v(ACC+16*nt,16)}, {v(fr,4)}, {a(OF[8*hh+u],4)}, {c}"))
            if u % 2 == 1:
                w2 = u // 2
                for t in range(3):
                    fr = F9[f9c % 4]; f9c += 1
                    j = len(mf)
                    for rd in range(2):
                        row = 128*hh + 32*w2 + 16*rd
                        wn = row // 192
                        fill.append((max(j-LEAD-2, -1), Ins(f"ds_read_b64_tr_b16 {v(fr+2*rd,2)}, {v(vR9[wn])} offset:{(row-192*wn)*320 + 128*t}")))
                    c = "0" if (hh == 0 and w2 == 0) else v(ACC9+4*t, 4)
                    mf.append(Ins(f"v_mfma_f32_16x16x32_bf16 {v(ACC9+4*t,4)}, {v(fr,4)}, {a(O9F[4*hh+w2],4)}, {c}"))
        k = 0
        fill.sort(key=lambda x: x[0])
        for i in range(-1, len(mf)):
            if i >= 0: P.add(mf[i])
            while k < len(fill) and fill[k][0] <= i:
                P.add(fill[k][1]); k += 1
    ST()
    P(f"s_mul_i32 s44, s40, 20480\nv_lshlrev_b32 {v(T[0])}, 4, {l}\nv_add_u32 {v(T[1])}, s44, {v(T[0])}")
    for nt in range(5):
        P(f"s_mov_b32 s50, {4096*nt}")
        for g in range(4):
            P(f"buffer_store_dwordx4 {v(ACC+16*nt+4*g,4)}, {v(T[1])}, {srd(sP)}, s50 offen offset:{1024*g}")
    P(f"s_mul_i32 s44, s40, 3072\ns_add_u32 s44, s44, 81920\nv_add_u32 {v(T[2])}, s44, {v(T[0])}")
    for t in range(3):
        P(f"buffer_store_dwordx4 {v(ACC9+4*t,4)}, {v(T[2])}, {srd(sP)}, 0 offen offset:{1024*t}")
    if stamps: stamp_out(P, ST, name, 20, v(T[3]), v(T[4]))
    P(f"L_end_{name}:\ns_endpgm")
    st = {}
    body = P.render(st)
    print(f"{name}: vgpr {V.hi} agpr {A.hi} stats {st}")
    return kernel_head(name) + body + kernel_desc(name, 512, 100, 256)

def gen_k3(name="reduce_kernel", stamps=False):
    P = Prog()
    ST = Stamps(P, stamps, 0, 60)
    P(f"s_cmp_ge_u32 s2, 736\ns_cbranch_scc1 L_end_{name}")
    ST()
    P("s_load_dwordx8 s[12:19], s[0:1], 32")
    P("v_lshrrev_b32 v1, 6, v0\nv_and_b32 v2, 63, v0")
    P("v_readfirstlane_b32 s40, v1")
    P("s_mul_i32 s41, s2, 2850\ns_lshr_b32 s41, s41, 16\ns_mul_i32 s42, s41, 23\ns_sub_u32 s42, s2, s42")
    P.wait_all(vm=False)
    P(f"s_mul_i32 s44, s41, {8*PSTRIDE}\ns_add_u32 s44, s44, {PART}")
    P(f"s_add_u32 s20, s18, s44\ns_addc_u32 s21, s19, 0\ns_mov_b32 s22, {8*PSTRIDE}\ns_mov_b32 s23, 0x20000")
    P(f"s_mov_b32 s24, s14\ns_mov_b32 s25, s15\ns_mov_b32 s26, {8*144*640*2}\ns_mov_b32 s27, 0x20000")
    if stamps:
        P(f"s_mov_b32 s56, s18\ns_mov_b32 s57, s19\ns_mov_b32 s58, 0x10000000\ns_mov_b32 s59, 0x20000")
    P("s_lshl_b32 s45, s42, 12\nv_lshlrev_b32 v3, 4, v0\nv_add_u32 v3, s45, v3")
    for g in range(8):
        P(f"s_mov_b32 s50, {g*PSTRIDE}")
        P(f"buffer_load_dwordx4 v[{8+4*g}:{11+4*g}], v3, s[20:23], s50 offen")
    P("s_lshr_b32 s46, s41, 2\ns_and_b32 s47, s41, 3")
    P("s_mul_i32 s46, s46, 184320\ns_mul_i32 s47, s47, 320\ns_add_u32 s46, s46, s47")
    P(f"s_cmp_ge_u32 s42, 20\ns_cbranch_scc1 L_nine_{name}")
    P("s_mul_i32 s47, s42, 52\ns_lshr_b32 s47, s47, 8\ns_mul_i32 s48, s47, 5\ns_sub_u32 s48, s42, s48")
    P("s_mul_i32 s47, s47, 40960\ns_lshl_b32 s48, s48, 6\ns_lshl_b32 s49, s40, 4")
    P("s_add_u32 s46, s46, s47\ns_add_u32 s46, s46, s48\ns_add_u32 s46, s46, s49")
    P("v_and_b32 v4, 31, v2\nv_mul_u32_u24 v4, 1280, v4\nv_lshrrev_b32 v5, 5, v2\nv_lshl_add_u32 v4, v5, 3, v4")
    P(f"s_branch L_go_{name}")
    P(f"L_nine_{name}:")
    P("s_sub_u32 s47, s42, 20\ns_lshl_b32 s47, s47, 2\ns_add_u32 s47, s47, s40")
    P("s_mul_i32 s48, s47, 86\ns_lshr_b32 s48, s48, 8\ns_mul_i32 s49, s48, 3\ns_sub_u32 s49, s47, s49")
    P("s_lshl_b32 s49, s49, 2\ns_add_u32 s48, s48, s49")
    P(f"s_cmp_ge_u32 s48, 10\ns_cbranch_scc1 L_end_{name}")
    P(f"s_lshl_b32 s48, s48, 5\ns_add_u32 s46, s46, s48\ns_add_u32 s46, s46, {128*1280}")
    P("v_and_b32 v4, 15, v2\nv_mul_u32_u24 v4, 1280, v4\nv_lshrrev_b32 v5, 4, v2\nv_lshl_add_u32 v4, v5, 3, v4")
    P(f"L_go_{name}:")
    P("v_add_u32 v4, s46, v4")
    for g in range(1, 8):
        for i in range(4):
            P(f"v_add_f32 v{8+i}, v{8+i}, v{8+4*g+i}")
    P("v_cvt_pk_bf16_f32 v6, v8, v9\nv_cvt_pk_bf16_f32 v7, v10, v11")
    P("buffer_store_dwordx2 v[6:7], v4, s[24:27], 0 offen")
    if stamps:
        P(f"s_cmp_ge_u32 s2, 256\ns_cbranch_scc1 L_end_{name}")
        stamp_out(P, ST, name, 26, "v40", "v41")
    P(f"L_end_{name}:\ns_endpgm")
    body = P.render()
    return kernel_head(name) + body + kernel_desc(name, 48, 100, 48)
```

```python
import struct
from asmlib import *

def f2u(x):
    return struct.unpack("<I", struct.pack("<f", x))[0]

QSCALE = 1.4426950408889634 / (128 ** 0.5)
THR = 8.0

KBASE = 0
VBASE = 49152
SLOT = 16384
QA = 0
QB = 94208
XSZ = 36864
Q9X = 81920
MRG = 98304
O_STRIDE = 36864


class Stamps:
    def __init__(self, P, on, srd, base_sgpr):
        self.P = P; self.on = on; self.n = 0; self.srd = srd; self.base = base_sgpr

    def __call__(self):
        if not self.on:
            return
        assert self.n < 14
        r = self.base + 2 * self.n
        self.P(f"s_memrealtime s[{r}:{r+1}]")
        self.P("s_waitcnt lgkmcnt(0)")
        self.n += 1


def gen_k1(name="attn_kernel", stamps=False, cfg=None):
    cfg = cfg or {}
    LEAD = cfg.get("lead", 4)
    kvflag = cfg.get("kvflag", " nt")
    xwflag = cfg.get("xwflag", "")
    oflag = cfg.get("oflag", "")
    P = Prog()
    V = Alloc("v", 1, 256)
    A = Alloc("a", 0, 256)
    v = lambda b, n=1: rng("v", b, n)
    a = lambda b, n=1: rng("a", b, n)

    O = V.get(64, 4)
    O9 = V.get(32, 4)
    S = [V.get(16, 4), V.get(16, 4)]
    NEGM = V.get(16, 4)
    S9 = V.get(4); NEGM9 = V.get(4)
    PB = [V.get(8, 4), V.get(8, 4)]
    P9 = V.get(2)
    L = V.get(); L9 = V.get(); TM = V.get(); T9 = V.get()
    T = [V.get() for _ in range(8)]
    vKr = [V.get() for _ in range(8)]
    vVr = [V.get() for _ in range(4)]
    vK9r = [V.get() for _ in range(4)]
    vV9r = [V.get() for _ in range(8)]
    vKw = [V.get() for _ in range(4)]
    vVw = [V.get() for _ in range(2)]
    vLd = V.get()
    vLane = V.get()
    pool = list(range(S[1], S[1] + 16)) + list(range(NEGM, NEGM + 16)) + list(range(PB[0], PB[0] + 8)) + list(range(PB[1], PB[1] + 8))
    pg = lambda: pool.pop(0)
    vXr = [[pg() for _ in range(8)] for _ in range(2)]
    vX9r = [[pg() for _ in range(4)] for _ in range(2)]
    vWr = [[pg() for _ in range(4)] for _ in range(2)]
    vW9r = [pg() for _ in range(2)]
    vXd = [pg() for _ in range(4)]
    vWd = [pg() for _ in range(4)]
    NFR = 8
    FR = [A.get(4) for _ in range(NFR)]
    FB = [A.get(4) for _ in range(3)]
    F9 = [A.get(4) for _ in range(4)]
    FV9 = [A.get(2) for _ in range(8)]
    QF = [A.get(4) for _ in range(8)]
    Q9F = [A.get(4) for _ in range(4)]
    NST = cfg.get("nst", 8)
    STG = [A.get(16, 4) for _ in range(NST)]

    sX, sK, sV, sW, sO = 20, 24, 28, 32, 36
    sWv, sB, sH = 40, 41, 42
    sT = 43
    sOff = 50
    sRet = 52
    sQs = 54
    ST = Stamps(P, stamps, sO, 60)
    srd = lambda b: f"s[{b}:{b+3}]"

    P(f"s_cmp_ge_u32 s2, 256\ns_cbranch_scc1 L_end_{name}")
    ST()
    P("s_load_dwordx8 s[4:11], s[0:1], 0")
    P("s_load_dwordx8 s[12:19], s[0:1], 32")
    P(f"v_lshrrev_b32 {v(T[0])}, 6, v0")
    P(f"v_and_b32 {v(vLane)}, 63, v0")
    P(f"v_readfirstlane_b32 s{sWv}, {v(T[0])}")
    lh = cfg.get("lh", 2)
    if lh == -1:
        P(f"s_and_b32 s{sH}, s2, 31\ns_lshr_b32 s{sB}, s2, 5")
    else:
        P(f"s_and_b32 s{sT}, s2, 7\ns_lshr_b32 s{sT+1}, s2, 3")
        P(f"s_and_b32 s{sH}, s{sT}, {(32>>lh)-1}\ns_lshl_b32 s{sH}, s{sH}, {lh}\ns_and_b32 s{sB}, s{sT+1}, {(1<<lh)-1}\ns_add_u32 s{sH}, s{sH}, s{sB}")
        P(f"s_lshr_b32 s{sB}, s{sT}, {5-lh}\ns_lshl_b32 s{sB}, s{sB}, {5-lh}\ns_lshr_b32 s{sT+1}, s{sT+1}, {lh}\ns_add_u32 s{sB}, s{sB}, s{sT+1}")
    P(f"s_lshl_b32 s{sT+2}, s{sB}, 5\ns_add_u32 s{sT+2}, s{sT+2}, s{sH}")
    l = v(vLane)
    P(f"v_and_b32 {v(T[1])}, 15, {l}\nv_lshrrev_b32 {v(T[2])}, 4, {l}\nv_lshrrev_b32 {v(T[3])}, 5, {l}")
    P(f"v_and_b32 {v(T[4])}, 31, {l}\nv_bfe_u32 {v(T[5])}, {l}, 2, 2\nv_and_b32 {v(T[6])}, 3, {l}")
    P(f"s_lshl_b32 s{sT+3}, s{sWv}, 12")
    P(f"v_lshlrev_b32 {v(vLd)}, 4, {l}\nv_add_u32 {v(vLd)}, s{sT+3}, {v(vLd)}")
    P.wait_all(vm=False)
    P(f"s_lshl_b32 s{sT+4}, s{sT+2}, 18")
    P(f"s_add_u32 s{sK}, s6, s{sT+4}\ns_addc_u32 s{sK+1}, s7, 0\ns_mov_b32 s{sK+2}, 0x40000\ns_mov_b32 s{sK+3}, 0x20000")
    P(f"s_add_u32 s{sV}, s8, s{sT+4}\ns_addc_u32 s{sV+1}, s9, 0\ns_mov_b32 s{sV+2}, 0x40000\ns_mov_b32 s{sV+3}, 0x20000")

    seq = [("K", 0)]
    for s_ in range(1, 16):
        seq += [("K", s_), ("V", s_ - 1)]
    seq += [("V", 15)]
    tidx = {t: i for i, t in enumerate(seq)}

    def kv_load_ins(i):
        kind, t = seq[i]
        base = STG[i % NST]
        out = [Ins(f"s_mov_b32 s{sOff}, {t*SLOT}")]
        for n in range(4):
            out.append(Ins(f"buffer_load_dwordx4 {a(base+4*n,4)}, {v(vLd)}, {srd(sK if kind=='K' else sV)}, s{sOff} offen offset:{n*1024}{kvflag}", tok=("kv", i)))
        return out

    def kv_write_ins(i):
        kind, t = seq[i]
        base = STG[i % NST]
        out = []
        for n in range(4):
            if kind == "K":
                out.append(Ins(f"ds_write_b128 {v(vKw[n])}, {a(base+4*n,4)} offset:{(t%3)*SLOT}", tok=("kvw", i)))
            else:
                out.append(Ins(f"ds_write_b128 {v(vVw[n&1])}, {a(base+4*n,4)} offset:{(t%3)*SLOT+1024*n}", tok=("kvw", i)))
        return out

    nxt = [0]
    def issue_kv(n):
        for _ in range(n):
            if nxt[0] < len(seq):
                for I in kv_load_ins(nxt[0]): P.add(I)
                nxt[0] += 1

    kvsched = cfg.get("kvsched", [2, 2, 2, 2, 0, 0])
    issue_kv(kvsched[0])

    P(f"s_mul_i32 s{sT+5}, s{sB}, 184320")
    P(f"s_add_u32 s{sX}, s4, s{sT+5}\ns_addc_u32 s{sX+1}, s5, 0\ns_mov_b32 s{sX+2}, 184320\ns_mov_b32 s{sX+3}, 0x20000")
    P(f"s_lshl_b32 s{sT+5}, s{sH}, 8")
    P(f"s_add_u32 s{sW}, s10, s{sT+5}\ns_addc_u32 s{sW+1}, s11, 0\ns_sub_u32 s{sW+2}, {640*8192}, s{sT+5}\ns_mov_b32 s{sW+3}, 0x20000")
    P(f"s_mul_i32 s{sT+5}, s{sWv}, 36")
    P(f"v_add_u32 {v(T[0])}, s{sT+5}, {v(T[2])}")
    P(f"v_mul_u32_u24 {v(T[0])}, 1280, {v(T[0])}")
    for j in range(4):
        P(f"s_add_u32 s{sT+6}, s{sWv}, {j}\ns_and_b32 s{sT+6}, s{sT+6}, 3\ns_lshl_b32 s{sT+6}, s{sT+6}, 2")
        P(f"v_add_u32 {v(T[7])}, s{sT+6}, {v(T[2])}")
        P(f"v_xor_b32 {v(T[7])}, {v(T[7])}, {v(T[1])}")
        P(f"v_lshl_add_u32 {v(vXd[j])}, {v(T[7])}, 4, {v(T[0])}")
        if j: P(f"v_add_u32 {v(vXd[j])}, {j*4096}, {v(vXd[j])}")
    P(f"s_lshl_b32 s{sT+5}, s{sWv}, 4")
    P(f"v_add_u32 {v(T[0])}, s{sT+5}, {v(T[2])}\nv_lshlrev_b32 {v(T[0])}, 13, {v(T[0])}")
    P(f"v_lshlrev_b32 {v(T[7])}, 2, {v(T[2])}\nv_xor_b32 {v(T[7])}, {v(T[7])}, {v(T[1])}")
    P(f"v_lshl_add_u32 {v(vWd[0])}, {v(T[7])}, 4, {v(T[0])}")
    for j in range(1, 4):
        P(f"v_add_u32 {v(vWd[j])}, {j*31744}, {v(vWd[0])}")
    P(f"s_mul_i32 s{sQs}, s{sWv}, 9216")
    P(f"s_lshl_b32 s{sQs+1}, s{sWv}, 12")

    sRot = 90
    rot = cfg.get("rot", 1)
    if rot:
        P(f"s_mul_i32 s{sT+5}, s{sH}, {cfg.get('hmul', 1)}\ns_add_u32 s{sT+5}, s{sT+5}, s{sB}")
        P(f"s_mul_i32 s{sT+6}, s{sT+5}, 52\ns_lshr_b32 s{sT+6}, s{sT+6}, 8\ns_mul_i32 s{sT+6}, s{sT+6}, 5\ns_sub_u32 s{sRot}, s{sT+5}, s{sT+6}")
    else:
        P(f"s_mov_b32 s{sRot}, 0")
    for i in range(1, 5):
        P(f"s_add_u32 s{sRot+i}, s{sRot+i-1}, 1\ns_cmp_eq_u32 s{sRot+i}, 5\ns_cselect_b32 s{sRot+i}, 0, s{sRot+i}")

    def issue_sc(sc):
        base = QB if sc % 2 == 0 else QA
        P(f"s_lshl_b32 s{sOff+1}, s{sRot+sc}, 8")
        for g in range(3):
            P(f"s_add_u32 m0, s{sQs}, {base + 4096*g}")
            P(f"s_add_u32 s{sOff}, s{sOff+1}, {20480*g}")
            for j in range(4 if g < 2 else 1):
                P(f"buffer_load_dwordx4 {v(vXd[j])}, {srd(sX)}, s{sOff} offen offset:{1024*j}{xwflag} lds", tok=("sc", sc))
        P(f"s_lshl_b32 s{sOff+1}, s{sRot+sc}, 20")
        for half in range(2):
            P(f"s_add_u32 m0, s{sQs+1}, {base + XSZ + SLOT*half}")
            P(f"s_add_u32 s{sOff}, s{sOff+1}, {half*524288}")
            for j in range(4):
                P(f"buffer_load_dwordx4 {v(vWd[j])}, {srd(sW)}, s{sOff} offen offset:{1024*j}{xwflag} lds", tok=("sc", sc))

    issue_sc(0)
    issue_sc(1)
    issue_kv(kvsched[1])

    P(f"s_mul_i32 s{sT+5}, s{sT+2}, {O_STRIDE}")
    if stamps:
        P(f"s_mov_b32 s56, s18\ns_mov_b32 s57, s19\ns_mov_b32 s58, 0x10000000\ns_mov_b32 s59, 0x20000")
    P(f"s_add_u32 s{sO}, s18, s{sT+5}\ns_addc_u32 s{sO+1}, s19, 0\ns_mov_b32 s{sO+2}, {O_STRIDE}\ns_mov_b32 s{sO+3}, 0x20000")

    l15, l4, hf, l31, rr, cc = (v(T[i]) for i in range(1, 7))
    t0, t7 = v(T[0]), v(T[7])
    for kk in range(8):
        P(f"v_add_u32 {t0}, {2*kk}, {hf}\nv_xor_b32 {t0}, {t0}, {l15}\nv_lshlrev_b32 {t0}, 4, {t0}")
        P(f"v_lshl_add_u32 {v(vKr[kk])}, {l31}, 8, {t0}")
    P(f"s_lshl_b32 s{sT+5}, s{sWv}, 13")
    for kk in range(8):
        for sl, base in ((0, QB), (1, QA)):
            P(f"s_add_u32 s{sT+6}, s{sT+5}, {base}")
            P(f"v_add_u32 {v(vXr[sl][kk])}, s{sT+6}, {v(vKr[kk])}")
    P(f"s_lshl_b32 s{sT+5}, s{sWv}, 12")
    for kk in range(4):
        P(f"v_add_u32 {t0}, {4*kk}, {l4}\nv_xor_b32 {t0}, {t0}, {l15}\nv_lshlrev_b32 {t0}, 4, {t0}")
        P(f"v_lshl_add_u32 {t0}, {l15}, 8, {t0}")
        P(f"v_add_u32 {v(vK9r[kk])}, s{sT+5}, {t0}")
        P(f"v_add_u32 {v(vX9r[0][kk])}, {QB+32768}, {t0}")
        P(f"v_add_u32 {v(vX9r[1][kk])}, {QA+32768}, {t0}")
    G2 = v(TM); tmp = v(T9)
    P(f"v_and_b32 {G2}, 1, {l4}\nv_lshlrev_b32 {G2}, 1, {G2}")
    P(f"v_lshrrev_b32 {t0}, 1, {cc}\nv_add_u32 {t0}, {t0}, {G2}")
    P(f"v_lshlrev_b32 {t7}, 2, {rr}\nv_xor_b32 {t0}, {t0}, {t7}")
    P(f"v_lshlrev_b32 {t7}, 1, {hf}\nv_xor_b32 {t0}, {t0}, {t7}")
    P(f"v_lshl_add_u32 {t7}, {hf}, 2, {rr}\nv_lshlrev_b32 {t7}, 8, {t7}")
    P(f"v_and_b32 {tmp}, 1, {cc}\nv_lshl_add_u32 {t7}, {tmp}, 3, {t7}\nv_add_u32 {t7}, {VBASE}, {t7}")
    for dt in range(4):
        P(f"v_xor_b32 {tmp}, {4*dt}, {t0}\nv_lshl_add_u32 {v(vVr[dt])}, {tmp}, 4, {t7}")
    P(f"v_and_b32 {t0}, 1, {cc}\nv_add_u32 {t0}, {t0}, {G2}")
    P(f"v_lshlrev_b32 {t7}, 2, {rr}\nv_xor_b32 {t0}, {t0}, {t7}")
    P(f"v_lshl_add_u32 {t7}, {hf}, 3, {rr}\nv_lshlrev_b32 {t7}, 8, {t7}")
    P(f"v_lshrrev_b32 {tmp}, 1, {cc}\nv_lshl_add_u32 {t7}, {tmp}, 3, {t7}")
    for dt in range(4):
        P(f"v_xor_b32 {tmp}, {4*dt}, {t0}\nv_lshl_add_u32 {tmp}, {tmp}, 4, {t7}")
        P(f"v_add_u32 {v(vWr[0][dt])}, {QB+XSZ}, {tmp}\nv_add_u32 {v(vWr[1][dt])}, {QA+XSZ}, {tmp}")
    P(f"s_lshl_b32 s{sT+5}, s{sWv}, 2")
    P(f"v_add_u32 {t0}, s{sT+5}, {cc}\nv_lshlrev_b32 {t7}, 2, {rr}\nv_xor_b32 {t0}, {t0}, {t7}\nv_lshlrev_b32 {t0}, 4, {t0}")
    P(f"v_lshl_add_u32 {t7}, {l4}, 3, {rr}\nv_lshl_add_u32 {t0}, {t7}, 8, {t0}")
    P(f"v_add_u32 {v(vW9r[0])}, {QB+XSZ}, {t0}\nv_add_u32 {v(vW9r[1])}, {QA+XSZ}, {t0}")
    P(f"v_lshrrev_b32 {t0}, 1, {cc}\nv_lshlrev_b32 {t7}, 2, {rr}\nv_xor_b32 {t0}, {t0}, {t7}\nv_xor_b32 {t0}, {t0}, {G2}")
    P(f"v_lshl_add_u32 {t7}, {l4}, 2, {rr}\nv_lshlrev_b32 {t7}, 8, {t7}")
    P(f"v_and_b32 {tmp}, 1, {cc}\nv_lshl_add_u32 {t7}, {tmp}, 3, {t7}")
    P(f"s_lshl_b32 s{sT+5}, s{sWv}, 12\ns_add_u32 s{sT+5}, s{sT+5}, {VBASE}")
    P(f"v_add_u32 {t7}, s{sT+5}, {t7}")
    for d in range(8):
        P(f"v_xor_b32 {tmp}, {2*d}, {t0}\nv_lshl_add_u32 {v(vV9r[d])}, {tmp}, 4, {t7}")
    P(f"s_lshl_b32 s{sT+5}, s{sWv}, 12")
    P(f"v_lshlrev_b32 {t7}, 8, {l4}\nv_add_u32 {t7}, s{sT+5}, {t7}")
    for n in range(4):
        P(f"v_add_u32 {t0}, {4*n}, {l4}\nv_xor_b32 {t0}, {t0}, {l15}\nv_lshl_add_u32 {t0}, {t0}, 4, {t7}")
        P(f"v_add_u32 {v(vKw[n])}, {KBASE+1024*n}, {t0}")
    P(f"v_lshlrev_b32 {t0}, 2, {l4}\nv_xor_b32 {t0}, {t0}, {l15}")
    for n in range(2):
        P(f"v_xor_b32 {tmp}, {2*n}, {t0}\nv_lshl_add_u32 {tmp}, {tmp}, 4, {t7}\nv_add_u32 {v(vVw[n])}, {VBASE}, {tmp}")

    def merge(mf, fill):
        fill = sorted(fill, key=lambda x: (x[0], x[1]))
        k = 0
        def emit_upto(g):
            nonlocal k
            while k < len(fill) and fill[k][0] <= g:
                it = fill[k][2]
                if isinstance(it, Ins): P.add(it)
                else: it()
                k += 1
        emit_upto(-1)
        for i, (pre, I) in enumerate(mf):
            if pre: P.wait_regs(pre)
            P.add(I)
            emit_upto(i)
        emit_upto(10 ** 9)

    frc = [0]
    def qstep(sc):
        sl = sc % 2
        mf = []; fill = []; sq = [0]
        def F(g, it):
            fill.append((g, sq[0], it)); sq[0] += 1
        for kk in range(8):
            half, k4 = kk // 4, kk % 4
            fb = FB[kk % 3]
            j0 = len(mf)
            F(j0 - LEAD - 1, Ins(f"ds_read_b128 {a(fb,4)}, {v(vXr[sl][kk])}"))
            for dt in range(4):
                fr = FR[frc[0] % NFR]; frc[0] += 1
                j = len(mf)
                for rd in range(2):
                    F(j - LEAD - 1, Ins(f"ds_read_b64_tr_b16 {a(fr+2*rd,2)}, {v(vWr[sl][dt])} offset:{half*SLOT + (16*k4+4*rd)*256}"))
                c = "0" if (sc == 0 and kk == 0) else v(O + 16*dt, 16)
                mf.append(([a(fr, 4), a(fb, 4)], Ins(f"v_mfma_f32_32x32x16_bf16 {v(O+16*dt,16)}, {a(fr,4)}, {a(fb,4)}, {c}")))
            if kk % 2 == 1:
                k32 = kk // 2
                j = len(mf)
                xb = F9[2 + (k32 % 2)]
                F(j - LEAD - 3, Ins(f"ds_read_b128 {a(xb,4)}, {v(vX9r[sl][k32])}"))
                for Tt in range(2):
                    fr = F9[Tt]
                    for rd in range(2):
                        F(j - LEAD - 2 + Tt, Ins(f"ds_read_b64_tr_b16 {a(fr+2*rd,2)}, {v(vW9r[sl])} offset:{(k32//2)*SLOT + (32*(k32%2)+4*rd)*256 + 8*Tt}"))
                for Tt in range(2):
                    fr = F9[Tt]
                    c = "0" if (sc == 0 and k32 == 0) else v(O9 + 4*Tt, 4)
                    mf.append(([a(fr, 4), a(xb, 4)], Ins(f"v_mfma_f32_16x16x32_bf16 {v(O9+4*Tt,4)}, {a(fr,4)}, {a(xb,4)}, {c}")))
        fill[:] = [(max(g, -1), s_, it) for g, s_, it in fill]
        return mf, fill, F

    for sc in range(5):
        P.comment(f"---- qproj step {sc}")
        P.wait_tok(("sc", sc))
        P("s_barrier")
        if sc == 0 or sc == 4: ST()
        if 1 <= sc <= 3:
            issue_sc(sc + 1)
        issue_kv(kvsched[1 + sc] if sc >= 1 else 0)
        mf, fill, F = qstep(sc)
        if sc == 4:
            F(20, lambda: P.wait_tok(("kv", 0)))
            for n, I in enumerate(kv_write_ins(0)):
                F(21 + n, I)
        merge(mf, fill)
        P.wait_all(vm=False)

    P(f"s_mov_b32 s{sT}, {f2u(QSCALE):#x}")
    for i in range(8):
        P(f"v_mul_f32 {v(O9+i)}, s{sT}, {v(O9+i)}")
    for i in range(4):
        P(f"v_cvt_pk_bf16_f32 {v(S[0]+i)}, {v(O9+2*i)}, {v(O9+2*i+1)}")
    P(f"s_lshl_b32 s{sT+1}, s{sWv}, 10\ns_add_u32 s{sT+1}, s{sT+1}, {Q9X}")
    P(f"v_lshlrev_b32 {t0}, 4, {l}\nv_add_u32 {t7}, s{sT+1}, {t0}\nv_add_u32 {t0}, {Q9X}, {t0}")
    P(f"ds_write_b128 {t7}, {v(S[0],4)}")
    for i in range(64):
        P(f"v_mul_f32 {v(O+i)}, s{sT}, {v(O+i)}")
    P.wait_all(vm=False)
    P("s_barrier")
    issue_kv(1)
    for kk in range(4):
        P(f"ds_read_b128 {a(Q9F[kk],4)}, {t0} offset:{1024*kk}")
    for i in range(32):
        tr = v(T[1 + (i % 4)])
        P(f"v_cvt_pk_bf16_f32 {tr}, {v(O+2*i)}, {v(O+2*i+1)}")
        P(f"v_accvgpr_write_b32 {a(QF[i//4] + i % 4)}, {tr}")
    ST()

    mf = []; fill = []; sq = [0]
    def F(g, it):
        fill.append((g, sq[0], it)); sq[0] += 1

    def spread(items, g0, g1):
        tot = sum(c for c, _ in items)
        acc = 0
        for c, it in items:
            g = g0 + int((acc + 0.5 * c) * (g1 - g0 + 1) / tot)
            F(min(g, g1), it)
            acc += c

    def maxchain(dst, base, n):
        out = []
        if n == 16:
            out.append(Ins(f"v_max3_f32 {v(dst)}, {v(base)}, {v(base+1)}, {v(base+2)}"))
            for i in range(3, 15, 2):
                out.append(Ins(f"v_max3_f32 {v(dst)}, {v(dst)}, {v(base+i)}, {v(base+i+1)}"))
            out.append(Ins(f"v_max_f32 {v(dst)}, {v(dst)}, {v(base+15)}"))
        else:
            out.append(Ins(f"v_max3_f32 {v(dst)}, {v(base)}, {v(base+1)}, {v(base+2)}"))
            out.append(Ins(f"v_max_f32 {v(dst)}, {v(dst)}, {v(base+3)}"))
        return out

    def init_main():
        for I in maxchain(TM, S[0], 16): P.add(I)
        P(f"v_mov_b32 {t0}, {v(TM)}")
        P(f"v_permlane32_swap_b32 {v(TM)}, {t0}")
        P(f"v_max_f32 {v(TM)}, {v(TM)}, {t0}\nv_ceil_f32 {v(TM)}, {v(TM)}")
        for i in range(16): P(f"v_sub_f32 {v(NEGM+i)}, 0, {v(TM)}")
        for i in range(16): P(f"v_sub_f32 {v(S[0]+i)}, {v(S[0]+i)}, {v(TM)}")
        for I in maxchain(T9, S9, 4): P.add(I)
        P(f"v_mov_b32 {t0}, {v(T9)}")
        P(f"v_permlane16_swap_b32 {v(T9)}, {t0}")
        P(f"v_max_f32 {v(T9)}, {v(T9)}, {t0}\nv_mov_b32 {t0}, {v(T9)}")
        P(f"v_permlane32_swap_b32 {v(T9)}, {t0}")
        P(f"v_max_f32 {v(T9)}, {v(T9)}, {t0}\nv_ceil_f32 {v(T9)}, {v(T9)}")
        for i in range(4): P(f"v_sub_f32 {v(NEGM9+i)}, 0, {v(T9)}")
        for i in range(4): P(f"v_sub_f32 {v(S9+i)}, {v(S9+i)}, {v(T9)}")
        P(f"v_mov_b32 {v(L)}, 0\nv_mov_b32 {v(L9)}, 0")

    bar_gap = {}
    bar_gap[-1] = -1
    for u in range(-1, 33):
        odd = (u % 2 != 0)
        s_ = (u + 1) // 2
        g0 = len(mf)
        minr = bar_gap[s_ - 1]
        has_qk = u + 1 <= 31
        has_pv = 0 <= u - 1 <= 31
        has_sm = 0 <= u <= 31
        qk_last = None
        if has_qk:
            un = u + 1
            sb = S[un & 1]
            for kk in range(8):
                fr = FR[frc[0] % NFR]; frc[0] += 1
                j = len(mf)
                F(max(j - LEAD - 1, minr), Ins(f"ds_read_b128 {a(fr,4)}, {v(vKr[kk])} offset:{(s_%3)*SLOT + (un&1)*8192}"))
                c = (v(sb, 16) if kk else ("0" if un == 0 else v(NEGM, 16)))
                mf.append(([a(fr, 4)], Ins(f"v_mfma_f32_32x32x16_bf16 {v(sb,16)}, {a(fr,4)}, {a(QF[kk],4)}, {c}")))
            qk_last = len(mf) - 1
            if odd:
                for kk in range(4):
                    j = len(mf)
                    F(max(j - LEAD - 3, minr), Ins(f"ds_read_b128 {a(F9[kk],4)}, {v(vK9r[kk])} offset:{(s_%3)*SLOT}"))
                    c = (v(S9, 4) if kk else ("0" if un == 0 else v(NEGM9, 4)))
                    mf.append(([a(F9[kk], 4)], Ins(f"v_mfma_f32_16x16x32_bf16 {v(S9,4)}, {a(F9[kk],4)}, {a(Q9F[kk],4)}, {c}")))
        pv0 = len(mf)
        if has_pv:
            un = u - 1
            tv = un // 2
            pb = PB[un & 1]
            for ks in range(2):
                for dt in range(4):
                    fr = FR[frc[0] % NFR]; frc[0] += 1
                    j = len(mf)
                    for rd in range(2):
                        F(max(j - LEAD - 1, minr), Ins(f"ds_read_b64_tr_b16 {a(fr+2*rd,2)}, {v(vVr[dt])} offset:{(tv%3)*SLOT + (32*(un&1)+16*ks+8*rd)*256}"))
                    c = "0" if (un == 0 and ks == 0) else v(O + 16*dt, 16)
                    mf.append(([a(fr, 4)], Ins(f"v_mfma_f32_32x32x16_bf16 {v(O+16*dt,16)}, {a(fr,4)}, {v(pb+4*ks,4)}, {c}")))
            if odd:
                for d in range(8):
                    j = len(mf)
                    F(max(j - LEAD - 5, minr), Ins(f"ds_read_b64_tr_b16 {a(FV9[d],2)}, {v(vV9r[d])} offset:{(tv%3)*SLOT}"))
                    c = "0" if tv == 0 else v(O9 + 4*d, 4)
                    mf.append(([a(FV9[d], 2)], Ins(f"v_mfma_f32_16x16x16_bf16 {v(O9+4*d,4)}, {a(FV9[d],2)}, {v(P9,2)}, {c}")))
        g1 = len(mf) - 1
        items = []
        if has_sm:
            sb = S[u & 1]; pb = PB[u & 1]
            for i in range(0, 16, 2):
                items.append((2, Ins(f"v_exp_f32 {v(sb+i)}, {v(sb+i)}")))
                items.append((2, Ins(f"v_exp_f32 {v(sb+i+1)}, {v(sb+i+1)}")))
                items.append((1, Ins(f"v_add_f32 {v(L)}, {v(L)}, {v(sb+i)}")))
                items.append((1, Ins(f"v_cvt_pk_bf16_f32 {v(pb+i//2)}, {v(sb+i)}, {v(sb+i+1)}")))
                items.append((1, Ins(f"v_add_f32 {v(L)}, {v(L)}, {v(sb+i+1)}")))
            if not odd:
                for i in range(0, 4, 2):
                    items.append((2, Ins(f"v_exp_f32 {v(S9+i)}, {v(S9+i)}")))
                    items.append((2, Ins(f"v_exp_f32 {v(S9+i+1)}, {v(S9+i+1)}")))
                    items.append((1, Ins(f"v_add_f32 {v(L9)}, {v(L9)}, {v(S9+i)}")))
                    items.append((1, Ins(f"v_cvt_pk_bf16_f32 {v(P9+i//2)}, {v(S9+i)}, {v(S9+i+1)}")))
                    items.append((1, Ins(f"v_add_f32 {v(L9)}, {v(L9)}, {v(S9+i+1)}")))
            spread(items, g0, max(g0, g1 - 3))
        if not odd and s_ + 1 <= 16:
            tl = []
            if s_ + 1 <= 15: tl.append(tidx[("K", s_ + 1)])
            tl.append(tidx[("V", s_)])
            gw = g0 + 1
            F(gw, (lambda tl=tl: P.wait_tok(("kv", tl[-1]))))
            k = 0
            for i in tl:
                for I in kv_write_ins(i):
                    F(gw + 1 + k // 2, I); k += 1
            gb = min(gw + 1 + k // 2 + 2, g1 - 1)
            F(gb, (lambda tl=tl: (P.wait_tok(("kvw", tl[-1])), P("s_barrier"))))
            bar_gap[s_] = gb
            k = 0
            for i in tl:
                if nxt[0] < len(seq):
                    for I in kv_load_ins(nxt[0]):
                        F(min(gb + 1 + k // 2, g1), I); k += 1
                    nxt[0] += 1
        if has_qk:
            if u == -1:
                F(g1, init_main)
            else:
                mc = maxchain(TM, S[(u + 1) & 1], 16)
                if odd:
                    mc += maxchain(T9, S9, 4)
                    mc.append(Ins(f"v_max_f32 {t0}, {v(TM)}, {v(T9)}"))
                    mc.append(Ins(f"v_cmp_lt_f32 vcc, {f2u(THR):#x}, {t0}"))
                else:
                    mc.append(Ins(f"v_cmp_lt_f32 vcc, {f2u(THR):#x}, {v(TM)}"))
                gs = min(pv0 + 2, g1)
                spread([(1, I) for I in mc], gs, g1)
                lab = f"L_ok_{name}_{u}"
                F(g1, Ins(f"s_cbranch_vccz {lab}"))
                F(g1, Ins(f"s_call_b64 s[{sRet}:{sRet+1}], L_rare{'A' if odd else 'B'}_{name}"))
                F(g1, Ins(f"{lab}:"))
    mf2 = []
    for i, (pre, I) in enumerate(mf):
        if i % 2 == 0 and i + 1 < len(mf):
            mf2.append((pre + mf[i + 1][0], I))
        else:
            mf2.append((pre, I))
    abl = cfg.get("abl", "")
    def keep(it):
        if not isinstance(it, Ins):
            return "B" not in abl
        if "V" in abl and it.kind == "valu" and not it.op.startswith("v_cmp"): return False
        if "E" in abl and it.op == "v_exp_f32": return False
        if "R" in abl and it.op.startswith("ds_read"): return False
        if "T" in abl and it.op.startswith("ds_read_b64_tr"): return False
        if "W" in abl and it.op.startswith("ds_write"): return False
        if "G" in abl and it.kind == "vmem": return False
        if "C" in abl and (it.op.startswith("s_cbranch") or it.op.startswith("s_call") or it.op.startswith("v_cmp")): return False
        return True
    fill = [f for f in fill if keep(f[2])]
    if "M" in abl:
        mf2 = [(pre, Ins("s_nop 0")) for pre, I in mf2]
    if "9" in abl:
        mf2 = [(pre, Ins("s_nop 0") if "16x16" in I.op else I) for pre, I in mf2]
    merge(mf2, fill)
    ST()

    P(f"v_mov_b32 {t0}, {v(L9)}")
    P(f"v_permlane16_swap_b32 {v(L9)}, {t0}")
    P(f"v_add_f32 {v(L9)}, {v(L9)}, {t0}\nv_mov_b32 {t0}, {v(L9)}")
    P(f"v_permlane32_swap_b32 {v(L9)}, {t0}")
    P(f"v_add_f32 {v(NEGM9+1)}, {v(L9)}, {t0}")
    P(f"s_mul_i32 s{sT}, s{sWv}, 8704\ns_add_u32 s{sT}, s{sT}, {MRG}")
    P(f"v_lshlrev_b32 {t7}, 4, {l}\nv_add_u32 {t0}, s{sT}, {t7}")
    for d in range(8):
        P(f"ds_write_b128 {t0}, {v(O9+4*d,4)} offset:{1024*d}")
    P(f"v_lshlrev_b32 {v(T[1])}, 3, {l}\nv_add_u32 {v(T[2])}, s{sT}, {v(T[1])}")
    P(f"ds_write_b64 {v(T[2])}, {v(NEGM9,2)} offset:8192")
    P(f"v_mov_b32 {t0}, {v(L)}")
    P(f"v_permlane32_swap_b32 {v(L)}, {t0}")
    P(f"v_add_f32 {v(L)}, {v(L)}, {t0}\nv_rcp_f32 {v(L)}, {v(L)}")
    P.wait_all(vm=False)
    P("s_barrier")
    P(f"v_add_u32 {v(T[1])}, {MRG}, {v(T[1])}")
    P(f"s_lshl_b32 s{sT}, s{sWv}, 11\ns_add_u32 s{sT}, s{sT}, {MRG}")
    P(f"v_add_u32 {v(T[2])}, s{sT}, {t7}")
    for w in range(4):
        P(f"ds_read_b64 {v(S[1]+2*w,2)}, {v(T[1])} offset:{8704*w+8192}")
    dreg = lambda w, t: (S[0] if w < 2 else NEGM) + 8 * (w % 2) + 4 * t
    for w in range(4):
        for t in range(2):
            P(f"ds_read_b128 {v(dreg(w,t),4)}, {v(T[2])} offset:{8704*w+1024*t}")
    P(f"s_lshl_b32 s{sT}, s{sWv}, 13")
    P(f"v_add_u32 {v(T[3])}, s{sT}, {t7}")
    for fragi in range(8):
        b0 = O + 8 * fragi
        for i in range(8):
            P(f"v_mul_f32 {v(b0+i)}, {v(b0+i)}, {v(L)}")
        for i in range(4):
            P(f"v_cvt_pk_bf16_f32 {v(b0+i)}, {v(b0+2*i)}, {v(b0+2*i+1)}")
        if fragi < 4:
            P(f"buffer_store_dwordx4 {v(b0,4)}, {v(T[3])}, {srd(sO)}, 0 offen offset:{1024*fragi}{oflag}")
        else:
            if fragi == 4: P(f"v_add_u32 {v(T[4])}, 4096, {v(T[3])}")
            P(f"buffer_store_dwordx4 {v(b0,4)}, {v(T[4])}, {srd(sO)}, 0 offen offset:{1024*(fragi-4)}{oflag}")
    s1 = S[1]
    P(f"v_min3_f32 {t0}, {v(s1)}, {v(s1+2)}, {v(s1+4)}\nv_min_f32 {t0}, {t0}, {v(s1+6)}")
    for w in range(4):
        P(f"v_sub_f32 {v(s1+2*w)}, {t0}, {v(s1+2*w)}")
    for w in range(4):
        P(f"v_exp_f32 {v(s1+2*w)}, {v(s1+2*w)}")
    P(f"v_mul_f32 {t0}, {v(s1)}, {v(s1+1)}")
    for w in range(1, 4):
        P(f"v_fmac_f32 {t0}, {v(s1+2*w)}, {v(s1+2*w+1)}")
    P(f"v_rcp_f32 {t0}, {t0}")
    for w in range(4):
        P(f"v_mul_f32 {v(s1+2*w)}, {v(s1+2*w)}, {t0}")
    for i in range(8):
        P(f"v_mul_f32 {v(O9+i)}, {v(dreg(0,0)+i)}, {v(s1)}")
        for w in range(1, 4):
            P(f"v_fmac_f32 {v(O9+i)}, {v(dreg(w,0)+i)}, {v(s1+2*w)}")
    for i in range(4):
        P(f"v_cvt_pk_bf16_f32 {v(O9+8+i)}, {v(O9+2*i)}, {v(O9+2*i+1)}")
    P(f"s_lshl_b32 s{sT}, s{sWv}, 10\ns_add_u32 s{sT}, s{sT}, 32768")
    P(f"v_add_u32 {v(T[3])}, s{sT}, {t7}")
    P(f"buffer_store_dwordx4 {v(O9+8,4)}, {v(T[3])}, {srd(sO)}, 0 offen{oflag}")
    if stamps:
        P.wait_all()
        ST()
        P(f"s_lshl_b32 s{sT}, s2, 7\ns_add_u32 s{sT}, s{sT}, 0x8000000")
        P(f"v_lshlrev_b32 {t0}, 2, v0\nv_add_u32 {t0}, s{sT}, {t0}")
        P(f"v_mov_b32 {t7}, 0")
        for i in range(2 * ST.n):
            P(f"v_writelane_b32 {t7}, s{60+i}, {i}")
        P(f"v_cmp_gt_u32 vcc, {2*ST.n}, v0")
        P(f"s_and_saveexec_b64 s[{sT}:{sT+1}], vcc" if sT % 2 == 0 else f"s_and_saveexec_b64 s[{sT+1}:{sT+2}], vcc")
        P(f"s_cbranch_execz L_end_{name}")
        P(f"buffer_store_dword {t7}, {t0}, s[56:59], 0 offen")
    P(f"L_end_{name}:\ns_endpgm")

    def rare(lab, sb, pb, with9):
        P(f"{lab}:")
        P.fence()
        P(f"v_mov_b32 {t0}, {v(TM)}")
        P(f"v_permlane32_swap_b32 {v(TM)}, {t0}")
        P(f"v_max_f32 {v(TM)}, {v(TM)}, {t0}\nv_ceil_f32 {v(TM)}, {v(TM)}\nv_max_f32 {v(TM)}, 0, {v(TM)}")
        P(f"v_exp_f32 {t0}, -{v(TM)}")
        for i in range(16): P(f"v_sub_f32 {v(sb+i)}, {v(sb+i)}, {v(TM)}")
        for i in range(16): P(f"v_sub_f32 {v(NEGM+i)}, {v(NEGM+i)}, {v(TM)}")
        P(f"v_mul_f32 {v(L)}, {v(L)}, {t0}")
        for i in range(64): P(f"v_mul_f32 {v(O+i)}, {v(O+i)}, {t0}")
        for i in range(8):
            P(f"v_lshlrev_b32 {v(T[1])}, 16, {v(pb+i)}\nv_and_b32 {v(T[2])}, 0xffff0000, {v(pb+i)}")
            P(f"v_mul_f32 {v(T[1])}, {v(T[1])}, {t0}\nv_mul_f32 {v(T[2])}, {v(T[2])}, {t0}")
            P(f"v_cvt_pk_bf16_f32 {v(pb+i)}, {v(T[1])}, {v(T[2])}")
        if with9:
            P(f"v_mov_b32 {t0}, {v(T9)}")
            P(f"v_permlane16_swap_b32 {v(T9)}, {t0}")
            P(f"v_max_f32 {v(T9)}, {v(T9)}, {t0}\nv_mov_b32 {t0}, {v(T9)}")
            P(f"v_permlane32_swap_b32 {v(T9)}, {t0}")
            P(f"v_max_f32 {v(T9)}, {v(T9)}, {t0}\nv_ceil_f32 {v(T9)}, {v(T9)}\nv_max_f32 {v(T9)}, 0, {v(T9)}")
            P(f"v_exp_f32 {t0}, -{v(T9)}")
            for i in range(4): P(f"v_sub_f32 {v(S9+i)}, {v(S9+i)}, {v(T9)}")
            for i in range(4): P(f"v_sub_f32 {v(NEGM9+i)}, {v(NEGM9+i)}, {v(T9)}")
            P(f"v_mul_f32 {v(L9)}, {v(L9)}, {t0}")
            for i in range(32): P(f"v_mul_f32 {v(O9+i)}, {v(O9+i)}, {t0}")
        P("s_nop 3")
        P(f"s_setpc_b64 s[{sRet}:{sRet+1}]")
    rare(f"L_rareA_{name}", S[0], PB[1], True)
    rare(f"L_rareB_{name}", S[1], PB[0], False)

    st = {}
    body = P.render(st)
    print(f"{name}: vgpr {V.hi} agpr {A.hi} stats {st}")
    return kernel_head(name) + body + kernel_desc(name, 512, 100, 256)
```

```python
import struct
from asmlib import *

def f2u(x):
    return struct.unpack("<I", struct.pack("<f", x))[0]

QSCALE = 1.4426950408889634 / (128 ** 0.5)
THR = 8.0
SLOT = 16384
CH = 34816
XS = 18432
Q9X = 139264
VB = 65536
O_STRIDE = 36864
ACC_OFF = 168


class Stamps:
    cyc = False
    def __init__(self, P, on, base_sgpr=60):
        self.P = P; self.on = on; self.n = 0; self.base = base_sgpr

    def __call__(self):
        if not self.on:
            return
        assert self.n < 20
        r = self.base + 2 * self.n
        self.P(f"s_memrealtime s[{r}:{r+1}]")
        if Stamps.cyc:
            self.P(f"s_memtime s[{r+2}:{r+3}]")
            self.n += 1
        self.P("s_waitcnt lgkmcnt(0)")
        self.n += 1

    def out(self, P, name, slot0, t0, t7, endlab):
        P.wait_all()
        self()
        P(f"s_lshl_b32 s44, s2, 8\ns_add_u32 s44, s44, {0x8000000 + slot0*8}")
        P(f"v_and_b32 {t7}, 0xff, v0\nv_lshlrev_b32 {t0}, 2, {t7}\nv_add_u32 {t0}, s44, {t0}")
        P(f"v_cmp_gt_u32 vcc, {2*self.n}, {t7}")
        P(f"v_mov_b32 {t7}, 0")
        for i in range(2 * self.n):
            P(f"v_writelane_b32 {t7}, s{self.base+i}, {i}")
        P(f"s_and_saveexec_b64 s[44:45], vcc")
        P(f"s_cbranch_execz {endlab}")
        P(f"buffer_store_dword {t7}, {t0}, s[56:59], 0 offen")


def merge(P, mf, fill):
    fill = sorted(fill, key=lambda x: (x[0], x[1]))
    k = 0
    def emit_upto(g):
        nonlocal k
        while k < len(fill) and fill[k][0] <= g:
            it = fill[k][2]
            if isinstance(it, Ins): P.add(it)
            else: it()
            k += 1
    emit_upto(-1)
    for i, (pre, I) in enumerate(mf):
        if pre: P.wait_regs(pre)
        P.add(I)
        emit_upto(i)
    emit_upto(10 ** 9)


v = lambda b, n=1: rng("v", b, n)
a = lambda b, n=1: rng("a", b, n)
srd = lambda b: f"s[{b}:{b+3}]"
sX, sK, sV, sW, sO = 20, 24, 28, 32, 36
sWv, sB, sH, sT, sOff, sRet, sQs = 40, 41, 42, 43, 50, 52, 54
sBH = 77
sG = 78
sRot = 80

seq = [("K", 0)]
for _s in range(1, 16):
    seq += [("K", _s), ("V", _s - 1)]
seq += [("V", 15)]
tidx = {t: i for i, t in enumerate(seq)}


def slot_addr(kind, t, plan):
    return plan[(kind, t)]


def default_slots():
    pl = {}
    for t in range(16):
        pl[("K", t)] = ((t % 2) if t < 4 else ((t - 2) % 4)) * SLOT
        pl[("V", t)] = VB + (t % 6) * SLOT
    return pl


def lane_consts(P, T, vLane):
    l = v(vLane)
    P(f"v_and_b32 {v(T[1])}, 15, {l}\nv_lshrrev_b32 {v(T[2])}, 4, {l}\nv_lshrrev_b32 {v(T[3])}, 5, {l}")
    P(f"v_and_b32 {v(T[4])}, 31, {l}\nv_bfe_u32 {v(T[5])}, {l}, 2, 2\nv_and_b32 {v(T[6])}, 3, {l}")


def maxchain(dst, base, n):
    out = []
    out.append(Ins(f"v_max3_f32 {v(dst)}, {v(base)}, {v(base+1)}, {v(base+2)}"))
    if n == 16:
        for i in range(3, 15, 2):
            out.append(Ins(f"v_max3_f32 {v(dst)}, {v(dst)}, {v(base+i)}, {v(base+i+1)}"))
        out.append(Ins(f"v_max_f32 {v(dst)}, {v(dst)}, {v(base+15)}"))
    else:
        out.append(Ins(f"v_max_f32 {v(dst)}, {v(dst)}, {v(base+3)}"))
    return out


def gen_C(name, stamps, cfg, slots):
    LEAD = cfg.get("lead", 4)
    WG = cfg.get("wgrp", 2)
    oflag = cfg.get("oflag", "")
    P = Prog()
    V = Alloc("v", 1, ACC_OFF)
    A = Alloc("a", 0, 256 - ACC_OFF)
    O = V.get(64, 4)
    S = [V.get(16, 4), V.get(16, 4)]
    NEGM = V.get(16, 4)
    PB = [V.get(8, 4), V.get(8, 4)]
    L = V.get(); TM = V.get()
    T = [V.get() for _ in range(8)]
    vKr = [V.get() for _ in range(8)]
    vVr = [[V.get() for _ in range(4)] for _ in range(2)]
    vLane = V.get()
    pool = list(range(S[1], S[1] + 16))
    vXr = [[pool.pop(0) for _ in range(4)] for _ in range(2)]
    vWr = [[pool.pop(0) for _ in range(4)] for _ in range(2)]
    NFR = 8
    FR = [A.get(4) for _ in range(NFR)]
    FB = [A.get(4) for _ in range(3)]
    QF = [A.get(4) for _ in range(8)]
    ST = Stamps(P, stamps)
    ST.n = 1
    l = v(vLane)
    P(f"L_C_{name}:")
    P(f"v_and_b32 {l}, 63, v0")
    lane_consts(P, T, vLane)
    l15, l4, hf, l31, rr, cc = (v(T[i]) for i in range(1, 7))
    t0, t7 = v(T[0]), v(T[7])
    tmp = v(TM); G2 = v(L)
    P(f"s_lshl_b32 s{sT}, s{sWv}, 12")
    P(f"v_bfe_u32 {tmp}, {l31}, 1, 3\nv_lshlrev_b32 {t7}, 7, {l31}\nv_add_u32 {t7}, s{sT}, {t7}")
    for kk in range(4):
        P(f"v_add_u32 {t0}, {2*kk}, {hf}\nv_xor_b32 {t0}, {t0}, {tmp}")
        P(f"v_lshl_add_u32 {v(vXr[0][kk])}, {t0}, 4, {t7}\nv_add_u32 {v(vXr[1][kk])}, {2*CH}, {v(vXr[0][kk])}")
    P(f"v_and_b32 {G2}, 1, {l4}\nv_lshlrev_b32 {G2}, 1, {G2}")
    P(f"v_and_b32 {t0}, 1, {cc}\nv_add_u32 {t0}, {t0}, {G2}")
    P(f"v_lshlrev_b32 {t7}, 2, {rr}\nv_xor_b32 {t0}, {t0}, {t7}")
    P(f"v_lshl_add_u32 {t7}, {hf}, 3, {rr}\nv_lshlrev_b32 {t7}, 8, {t7}")
    P(f"v_lshrrev_b32 {tmp}, 1, {cc}\nv_lshl_add_u32 {t7}, {tmp}, 3, {t7}")
    for dt in range(4):
        P(f"v_xor_b32 {tmp}, {4*dt}, {t0}\nv_lshl_add_u32 {tmp}, {tmp}, 4, {t7}")
        P(f"v_add_u32 {v(vWr[0][dt])}, {XS}, {tmp}\nv_add_u32 {v(vWr[1][dt])}, {XS+2*CH}, {tmp}")
    for kk in range(8):
        P(f"v_add_u32 {t0}, {2*kk}, {hf}\nv_xor_b32 {t0}, {t0}, {l15}\nv_lshlrev_b32 {t0}, 4, {t0}")
        P(f"v_lshl_add_u32 {v(vKr[kk])}, {l31}, 8, {t0}")
    P(f"v_lshrrev_b32 {t0}, 1, {cc}\nv_add_u32 {t0}, {t0}, {G2}")
    P(f"v_lshlrev_b32 {t7}, 2, {rr}\nv_xor_b32 {t0}, {t0}, {t7}")
    P(f"v_lshlrev_b32 {t7}, 1, {hf}\nv_xor_b32 {t0}, {t0}, {t7}")
    P(f"v_lshl_add_u32 {t7}, {hf}, 2, {rr}\nv_lshlrev_b32 {t7}, 8, {t7}")
    P(f"v_and_b32 {tmp}, 1, {cc}\nv_lshl_add_u32 {t7}, {tmp}, 3, {t7}\nv_add_u32 {t7}, {VB}, {t7}")
    for dt in range(4):
        P(f"v_xor_b32 {tmp}, {4*dt}, {t0}\nv_lshl_add_u32 {v(vVr[0][dt])}, {tmp}, 4, {t7}")
        P(f"v_add_u32 {v(vVr[1][dt])}, 65536, {v(vVr[0][dt])}")
    if cfg.get("prioC"): P(f"s_setprio {cfg['prioC']}")

    mf = []; fill = []; sq = [0]
    def F(g, it):
        fill.append((g, sq[0], it)); sq[0] += 1
    frc = [0]
    def bar(extra=None):
        def f():
            P.wait_all(vm=False)
            P("s_barrier")
            if extra: extra()
        return f
    F(-1, bar(ST))
    minr = -1
    for ci in range(10):
        cs = ci % 4
        sl, off = cs // 2, (cs % 2) * CH
        for kk in range(4):
            fb = FB[(4 * ci + kk) % 3]
            F(max(len(mf) - LEAD - 1, minr), Ins(f"ds_read_b128 {a(fb,4)}, {v(vXr[sl][kk])} offset:{off}"))
            for dt in range(4):
                fr = FR[frc[0] % NFR]; frc[0] += 1
                j = len(mf)
                for rd in range(2):
                    F(max(j - LEAD - 1, minr), Ins(f"ds_read_b64_tr_b16 {a(fr+2*rd,2)}, {v(vWr[sl][dt])} offset:{off + (16*kk+4*rd)*256}"))
                c = "0" if (ci == 0 and kk == 0) else v(O + 16*dt, 16)
                mf.append(([a(fr, 4), a(fb, 4)], Ins(f"v_mfma_f32_32x32x16_bf16 {v(O+16*dt,16)}, {a(fr,4)}, {a(fb,4)}, {c}")))
        gb = len(mf) - 1 - (LEAD - 1)
        F(gb, bar(ST if cfg.get('qst') else None))
        minr = gb
    g_q = len(mf) - 1
    def qconv():
        ST()
        P(f"s_mov_b32 s{sT}, {f2u(QSCALE):#x}")
        for i in range(32):
            tr = v(T[1 + (i % 4)])
            P(f"v_mul_f32 {v(O+2*i)}, s{sT}, {v(O+2*i)}\nv_mul_f32 {v(O+2*i+1)}, s{sT}, {v(O+2*i+1)}")
            P(f"v_cvt_pk_bf16_f32 {tr}, {v(O+2*i)}, {v(O+2*i+1)}")
            P(f"v_accvgpr_write_b32 {a(QF[i//4] + i % 4)}, {tr}")
        ST()
    F(g_q, qconv)

    def spread(items, g0, g1):
        tot = sum(c for c, _ in items)
        acc = 0
        for c, it in items:
            g = g0 + int((acc + 0.5 * c) * (g1 - g0 + 1) / tot)
            F(min(g, g1), it)
            acc += c

    def init_main():
        for I in maxchain(TM, S[0], 16): P.add(I)
        P(f"v_mov_b32 {t0}, {v(TM)}")
        P(f"v_permlane32_swap_b32 {v(TM)}, {t0}")
        P(f"v_max_f32 {v(TM)}, {v(TM)}, {t0}\nv_ceil_f32 {v(TM)}, {v(TM)}")
        for i in range(16): P(f"v_sub_f32 {v(NEGM+i)}, 0, {v(TM)}")
        for i in range(16): P(f"v_sub_f32 {v(S[0]+i)}, {v(S[0]+i)}, {v(TM)}")
        P(f"v_mov_b32 {v(L)}, 0")

    bar_gap = {-1: minr}
    att0 = len(fill)
    mf0 = len(mf)
    for u in range(-1, 33):
        odd = (u % 2 != 0)
        s_ = (u + 1) // 2
        g0 = len(mf)
        minr = bar_gap[s_ - 1]
        has_qk = u + 1 <= 31
        has_pv = 0 <= u - 1 <= 31
        has_sm = 0 <= u <= 31
        if has_qk:
            un = u + 1
            sb = S[un & 1]
            for kk in range(8):
                fr = FR[frc[0] % NFR]; frc[0] += 1
                j = len(mf)
                F(max(j - LEAD - 1, minr), Ins(f"ds_read_b128 {a(fr,4)}, {v(vKr[kk])} offset:{slots[('K',s_)] + (un&1)*8192}"))
                c = (v(sb, 16) if kk else ("0" if un == 0 else v(NEGM, 16)))
                mf.append(([a(fr, 4)], Ins(f"v_mfma_f32_32x32x16_bf16 {v(sb,16)}, {a(fr,4)}, {a(QF[kk],4)}, {c}")))
        pv0 = len(mf)
        if has_pv:
            un = u - 1
            tv = un // 2
            pb = PB[un & 1]
            so = slots[("V", tv)] - VB
            wn, so = so >> 16, so & 0xffff
            for ks in range(2):
                for dt in range(4):
                    fr = FR[frc[0] % NFR]; frc[0] += 1
                    j = len(mf)
                    for rd in range(2):
                        F(max(j - LEAD - 1, minr), Ins(f"ds_read_b64_tr_b16 {a(fr+2*rd,2)}, {v(vVr[wn][dt])} offset:{so + (32*(un&1)+16*ks+8*rd)*256}"))
                    c = "0" if (un == 0 and ks == 0) else v(O + 16*dt, 16)
                    mf.append(([a(fr, 4)], Ins(f"v_mfma_f32_32x32x16_bf16 {v(O+16*dt,16)}, {a(fr,4)}, {v(pb+4*ks,4)}, {c}")))
        g1 = len(mf) - 1
        items = []
        if has_sm:
            sb = S[u & 1]; pb = PB[u & 1]
            for i in range(0, 16, 2):
                items.append((2, Ins(f"v_exp_f32 {v(sb+i)}, {v(sb+i)}")))
                items.append((2, Ins(f"v_exp_f32 {v(sb+i+1)}, {v(sb+i+1)}")))
                items.append((1, Ins(f"v_add_f32 {v(L)}, {v(L)}, {v(sb+i)}")))
                items.append((1, Ins(f"v_cvt_pk_bf16_f32 {v(pb+i//2)}, {v(sb+i)}, {v(sb+i+1)}")))
                items.append((1, Ins(f"v_add_f32 {v(L)}, {v(L)}, {v(sb+i+1)}")))
            spread(items, g0, max(g0, g1 - cfg.get("smtail", 3)))
        if not odd and s_ + 1 <= 16:
            gb = (pv0 - 1 if has_qk else g0) + cfg.get("baroff", 0)
            gb = min(gb, g1)
            F(gb, Ins("s_barrier"))
            if cfg.get("ast") and s_ % 2 == 1: F(gb, ST)
            bar_gap[s_] = gb
        if has_qk:
            if u == -1:
                F(g1, init_main)
            else:
                mc = maxchain(TM, S[(u + 1) & 1], 16)
                mc.append(Ins(f"v_cmp_lt_f32 vcc, {f2u(THR):#x}, {v(TM)}"))
                gs = min(pv0 + 2, g1)
                spread([(1, I) for I in mc], gs, max(gs, g1 - 1))
                lab = f"L_ok_{name}_{u}"
                F(g1, Ins(f"s_cbranch_vccz {lab}"))
                F(g1, Ins(f"s_call_b64 s[{sRet}:{sRet+1}], L_rare{'A' if odd else 'B'}_{name}"))
                F(g1, Ins(f"{lab}:"))
    mf2 = []
    for i, (pre, I) in enumerate(mf):
        if i % WG == 0:
            pp = []
            for k in range(i, min(i + WG, len(mf))): pp += mf[k][0]
            mf2.append((pp, I))
        else:
            mf2.append((pre, I))
    abl = cfg.get("abl", "")
    def keep(it):
        if not isinstance(it, Ins): return True
        if "V" in abl and it.kind == "valu" and not it.op.startswith("v_cmp"): return False
        if "R" in abl and it.op.startswith("ds_read"): return False
        if "C" in abl and (it.op.startswith("s_cbranch") or it.op.startswith("s_call") or it.op.startswith("v_cmp")): return False
        return True
    fill = fill[:att0] + [f for f in fill[att0:] if keep(f[2])]
    if "M" in abl:
        mf2 = mf2[:mf0] + [(pre, Ins("s_nop 0")) for pre, I in mf2[mf0:]]
    if "S" in abl:
        import re as _re
        cnt = [0]
        def split(I):
            m = _re.match(r"v_mfma_f32_32x32x16_bf16 v\[(\d+):\d+\], (\S+), (\S+), (\S+)", I.text)
            d = int(m.group(1)); c = m.group(4)
            cb = None if c == "0" else int(_re.match(r"v\[(\d+)", c).group(1))
            o = 8 * (cnt[0] % 2); cnt[0] += 1
            r = []
            for h in range(2):
                cc_ = "0" if cb is None else v(cb + o + 4*h, 4)
                r.append(Ins(f"v_mfma_f32_16x16x32_bf16 {v(d+o+4*h,4)}, {m.group(2)}, {m.group(3)}, {cc_}"))
            return r
        new = mf2[:mf0]
        byg = {}
        for gi in range(mf0, len(mf2)):
            r = split(mf2[gi][1])
            new.append((mf2[gi][0], r[0]))
            byg[gi] = r[1]
        mf2 = new
        fs = sorted(fill, key=lambda x: (x[0], x[1]))
        from collections import defaultdict
        gg = defaultdict(list)
        for f_ in fs: gg[f_[0]].append(f_)
        fill = []
        for g_ in sorted(set(list(gg.keys()) + list(byg.keys()))):
            lst = gg.get(g_, [])
            h = len(lst) // 2
            seq_ = lst[:h] + ([(g_, 0, byg[g_])] if g_ in byg else []) + lst[h:]
            for k_, e in enumerate(seq_): fill.append((g_, k_, e[2]))
    merge(P, mf2, fill)
    ST()
    P(f"v_mov_b32 {t0}, {v(L)}")
    P(f"v_permlane32_swap_b32 {v(L)}, {t0}")
    P(f"v_add_f32 {v(L)}, {v(L)}, {t0}\nv_rcp_f32 {v(L)}, {v(L)}")
    P("s_barrier")
    P(f"s_lshl_b32 s{sT}, s{sWv}, 13")
    P(f"v_lshlrev_b32 {t7}, 4, {l}\nv_add_u32 {v(T[3])}, s{sT}, {t7}\nv_add_u32 {v(T[4])}, 4096, {v(T[3])}")
    for fragi in range(8):
        b0 = O + 8 * fragi
        for i in range(8):
            P(f"v_mul_f32 {v(b0+i)}, {v(b0+i)}, {v(L)}")
        for i in range(4):
            P(f"v_cvt_pk_bf16_f32 {v(b0+i)}, {v(b0+2*i)}, {v(b0+2*i+1)}")
        P(f"buffer_store_dwordx4 {v(b0,4)}, {v(T[3] if fragi < 4 else T[4])}, {srd(sO)}, 0 offen offset:{1024*(fragi%4)}{oflag}")
    if stamps:
        P(f"s_cmp_lg_u32 s{sWv}, 0\ns_cbranch_scc1 L_end_{name}")
        ST.out(P, name, 0, t0, t7, f"L_end_{name}")
    P(f"L_end_{name}:\ns_endpgm")

    def rare(lab, sb, pb):
        P(f"{lab}:")
        P.fence()
        P(f"v_mov_b32 {t0}, {v(TM)}")
        P(f"v_permlane32_swap_b32 {v(TM)}, {t0}")
        P(f"v_max_f32 {v(TM)}, {v(TM)}, {t0}\nv_ceil_f32 {v(TM)}, {v(TM)}\nv_max_f32 {v(TM)}, 0, {v(TM)}")
        P(f"v_exp_f32 {t0}, -{v(TM)}")
        for i in range(16): P(f"v_sub_f32 {v(sb+i)}, {v(sb+i)}, {v(TM)}")
        for i in range(16): P(f"v_sub_f32 {v(NEGM+i)}, {v(NEGM+i)}, {v(TM)}")
        P(f"v_mul_f32 {v(L)}, {v(L)}, {t0}")
        for i in range(64): P(f"v_mul_f32 {v(O+i)}, {v(O+i)}, {t0}")
        for i in range(8):
            P(f"v_lshlrev_b32 {v(T[1])}, 16, {v(pb+i)}\nv_and_b32 {v(T[2])}, 0xffff0000, {v(pb+i)}")
            P(f"v_mul_f32 {v(T[1])}, {v(T[1])}, {t0}\nv_mul_f32 {v(T[2])}, {v(T[2])}, {t0}")
            P(f"v_cvt_pk_bf16_f32 {v(pb+i)}, {v(T[1])}, {v(T[2])}")
        P("s_nop 3")
        P(f"s_setpc_b64 s[{sRet}:{sRet+1}]")
    rare(f"L_rareA_{name}", S[0], PB[1])
    rare(f"L_rareB_{name}", S[1], PB[0])
    st = {}
    body = P.render(st)
    print(f"{name} C: vgpr {V.hi} agpr {A.hi} stats {st}")
    return body


def gen_H(name, stamps, cfg, slots, grp, emit_rare):
    kvflag = cfg.get("kvflag", " nt")
    xwflag = cfg.get("xwflag", "")
    oflag = cfg.get("oflag", "")
    plan = cfg["plans"][grp]
    E = plan["E"]
    P = Prog()
    V = Alloc("v", 1, ACC_OFF)
    A = Alloc("a", 0, 256 - ACC_OFF)
    O9 = V.get(32, 4)
    S9 = V.get(4); NEGM9 = V.get(4); P9 = V.get(2)
    L9 = V.get(); T9 = V.get()
    T = [V.get() for _ in range(8)]
    vK9r = [V.get() for _ in range(4)]
    vV9r = [[V.get() for _ in range(8)] for _ in range(2)]
    vKd = [V.get() for _ in range(4)]
    vVd = [V.get() for _ in range(2)]
    vWrt = [V.get() for _ in range(3)]
    vLane = V.get()
    vXd = [V.get() for _ in range(2)]
    vWd = [V.get() for _ in range(4)]
    vX9r = [[V.get() for _ in range(2)] for _ in range(2)]
    vW9r = [V.get() for _ in range(2)]
    F9 = [A.get(4) for _ in range(4)]
    FV9 = [A.get(2) for _ in range(8)]
    Q9F = [A.get(4) for _ in range(4)]
    STG = []
    for e in range(E):
        if e == 0: STG.append(("v", O9 + 16))
        elif A.next + 16 <= A.limit: STG.append(("a", A.get(16, 4)))
        else: STG.append(("v", V.get(16, 4)))
    ST = Stamps(P, stamps)
    ST.n = 1
    l = v(vLane)
    lab = f"L_H{grp}_{name}"
    P(f"{lab}:")
    P(f"s_sub_u32 s{sWv}, s{sWv}, 4")
    P(f"v_and_b32 {l}, 63, v0")
    lane_consts(P, T, vLane)
    l15, l4, hf, l31, rr, cc = (v(T[i]) for i in range(1, 7))
    t0, t7 = v(T[0]), v(T[7])
    tmp = v(T9); G2 = v(L9)
    P(f"s_lshl_b32 s{sQs+1}, s{sWv}, 12")
    P(f"v_lshlrev_b32 {t7}, 8, {l4}\nv_add_u32 {t7}, s{sQs+1}, {t7}")
    for n in range(4):
        P(f"v_add_u32 {t0}, {4*n}, {l4}\nv_xor_b32 {t0}, {t0}, {l15}\nv_lshl_add_u32 {v(vKd[n])}, {t0}, 4, {t7}")
    P(f"v_lshlrev_b32 {t0}, 2, {l4}\nv_xor_b32 {t0}, {t0}, {l15}")
    for n in range(2):
        P(f"v_xor_b32 {tmp}, {2*n}, {t0}\nv_lshl_add_u32 {v(vVd[n])}, {tmp}, 4, {t7}")
    P(f"v_lshlrev_b32 {t7}, 5, {t7}")
    P(f"v_lshl_add_u32 {v(vWd[0])}, {t0}, 4, {t7}")
    for j in range(1, 4):
        P(f"v_add_u32 {v(vWd[j])}, {j*31744}, {v(vWd[0])}")
    P(f"s_mul_i32 s{sT}, s{sWv}, 36\ns_mul_i32 s{sT+1}, s{sWv}, 18\ns_mul_i32 s{sQs}, s{sWv}, 4608")
    P(f"v_lshrrev_b32 {t7}, 3, {l}\nv_add_u32 {t7}, s{sT}, {t7}\nv_mul_u32_u24 {t7}, 1280, {t7}")
    P(f"v_add_u32 {t0}, s{sT+1}, {l4}\nv_xor_b32 {t0}, {t0}, {l}\nv_and_b32 {t0}, 7, {t0}")
    P(f"v_lshl_add_u32 {v(vXd[0])}, {t0}, 4, {t7}")
    P(f"v_xor_b32 {t0}, 4, {t0}\nv_lshl_add_u32 {v(vXd[1])}, {t0}, 4, {t7}\nv_add_u32 {v(vXd[1])}, {10240-1024}, {v(vXd[1])}")

    def issue_chunk(ci):
        base = (ci % 4) * CH
        P(f"s_lshl_b32 s{sOff+1}, s{sRot+ci}, 7")
        for g in range(3):
            P(f"s_add_u32 m0, s{sQs}, {base + 2048*g}")
            P(f"s_add_u32 s{sOff}, s{sOff+1}, {20480*g}")
            if g == 2: P("s_mov_b32 exec_hi, 0")
            P(f"buffer_load_dwordx4 {v(vXd[0])}, {srd(sX)}, s{sOff} offen{xwflag} lds", tok=("ch", ci))
            if g < 2:
                P(f"buffer_load_dwordx4 {v(vXd[1])}, {srd(sX)}, s{sOff} offen offset:1024{xwflag} lds", tok=("ch", ci))
            else:
                P("s_mov_b32 exec_hi, -1")
        P(f"s_lshl_b32 s{sOff}, s{sRot+ci}, 19")
        P(f"s_add_u32 m0, s{sQs+1}, {base + XS}")
        for j in range(4):
            P(f"buffer_load_dwordx4 {v(vWd[j])}, {srd(sW)}, s{sOff} offen offset:{1024*j}{xwflag} lds", tok=("ch", ci))

    nxt = [0]
    habl = cfg.get("habl", "")
    def issue_kv(n=1):
        for _ in range(n):
            i = nxt[0]
            if i >= len(seq): return
            if "g" in habl and i >= 3:
                nxt[0] += 1
                continue
            kind, t = seq[i]
            P(f"s_mov_b32 s{sOff}, {t*SLOT}")
            if i >= E:
                P(f"s_add_u32 m0, s{sQs+1}, {slots[(kind,t)]}")
            for n_ in range(4):
                vo = v(vKd[n_]) if kind == "K" else v(vVd[n_ & 1])
                sr = srd(sK if kind == "K" else sV)
                if i < E:
                    k_, b_ = STG[i]
                    P(f"buffer_load_dwordx4 {rng(k_, b_+4*n_, 4)}, {vo}, {sr}, s{sOff} offen offset:{n_*1024}{kvflag}", tok=("kv", i))
                else:
                    P(f"buffer_load_dwordx4 {vo}, {sr}, s{sOff} offen offset:{n_*1024}{kvflag} lds", tok=("kv", i))
            nxt[0] += 1

    def publish(i):
        P.wait_tok(("kv", i))
        if i < E and not ("g" in habl and i >= 3):
            kind, t = seq[i]
            ad = slots[(kind, t)]
            k_, b_ = STG[i]
            for n_ in range(4):
                P(f"ds_write_b128 {v(vWrt[ad >> 16])}, {rng(k_, b_+4*n_, 4)} offset:{(ad & 0xffff) + 1024*n_}")

    def do(actions):
        for act in actions:
            if act[0] == "c": issue_chunk(act[1])
            elif act[0] == "k": issue_kv(act[1])

    do(plan["pre"])
    P(f"v_lshlrev_b32 {t0}, 4, {l}\nv_add_u32 {v(vWrt[0])}, s{sQs+1}, {t0}")
    P(f"v_add_u32 {v(vWrt[1])}, 65536, {v(vWrt[0])}\nv_add_u32 {v(vWrt[2])}, 131072, {v(vWrt[0])}")
    for kk in range(4):
        P(f"v_add_u32 {t0}, {4*kk}, {l4}\nv_xor_b32 {t0}, {t0}, {l15}\nv_lshlrev_b32 {t0}, 4, {t0}")
        P(f"v_lshl_add_u32 {t0}, {l15}, 8, {t0}")
        P(f"v_add_u32 {v(vK9r[kk])}, s{sQs+1}, {t0}")
    P(f"v_lshrrev_b32 {tmp}, 1, {l15}\nv_lshlrev_b32 {t7}, 7, {l15}\nv_add_u32 {t7}, 16384, {t7}")
    for kk in range(2):
        P(f"v_add_u32 {t0}, {4*kk}, {l4}\nv_xor_b32 {t0}, {t0}, {tmp}")
        P(f"v_lshl_add_u32 {v(vX9r[0][kk])}, {t0}, 4, {t7}\nv_add_u32 {v(vX9r[1][kk])}, {2*CH}, {v(vX9r[0][kk])}")
    P(f"s_lshl_b32 s{sT}, s{sWv}, 2")
    P(f"v_add_u32 {t0}, s{sT}, {cc}\nv_lshlrev_b32 {t7}, 2, {rr}\nv_xor_b32 {t0}, {t0}, {t7}\nv_lshlrev_b32 {t0}, 4, {t0}")
    P(f"v_lshl_add_u32 {t7}, {l4}, 3, {rr}\nv_lshl_add_u32 {t0}, {t7}, 8, {t0}")
    P(f"v_add_u32 {v(vW9r[0])}, {XS}, {t0}\nv_add_u32 {v(vW9r[1])}, {XS+2*CH}, {t0}")
    P(f"v_and_b32 {G2}, 1, {l4}\nv_lshlrev_b32 {G2}, 1, {G2}")
    P(f"v_lshrrev_b32 {t0}, 1, {cc}\nv_lshlrev_b32 {t7}, 2, {rr}\nv_xor_b32 {t0}, {t0}, {t7}\nv_xor_b32 {t0}, {t0}, {G2}")
    P(f"v_lshl_add_u32 {t7}, {l4}, 2, {rr}\nv_lshlrev_b32 {t7}, 8, {t7}")
    P(f"v_and_b32 {tmp}, 1, {cc}\nv_lshl_add_u32 {t7}, {tmp}, 3, {t7}")
    P(f"s_add_u32 s{sT}, s{sQs+1}, {VB}\nv_add_u32 {t7}, s{sT}, {t7}")
    for d in range(8):
        P(f"v_xor_b32 {tmp}, {2*d}, {t0}\nv_lshl_add_u32 {v(vV9r[0][d])}, {tmp}, 4, {t7}")
        P(f"v_add_u32 {v(vV9r[1][d])}, 65536, {v(vV9r[0][d])}")

    P.wait_tok(("ch", 0))
    P("s_barrier")
    for ci in range(10):
        cs = ci % 4
        sl, off = cs // 2, (cs % 2) * CH
        for k32 in range(2):
            P(f"ds_read_b128 {a(Q9F[k32],4)}, {v(vX9r[sl][k32])} offset:{off}")
            for Tt in range(2):
                for rd in range(2):
                    P(f"ds_read_b64_tr_b16 {a(F9[2*k32+Tt]+2*rd,2)}, {v(vW9r[sl])} offset:{off + (32*k32+4*rd)*256 + 8*Tt}")
        do(plan["q"][ci])
        for k32 in range(2):
            for Tt in range(2):
                c = "0" if (ci == 0 and k32 == 0) else v(O9 + 4*Tt, 4)
                P(f"v_mfma_f32_16x16x32_bf16 {v(O9+4*Tt,4)}, {a(F9[2*k32+Tt],4)}, {a(Q9F[k32],4)}, {c}")
        if ci < 9:
            P.wait_tok(("ch", ci + 1))
        else:
            P(f"s_mov_b32 s{sT}, {f2u(QSCALE):#x}")
            for i in range(8): P(f"v_mul_f32 {v(O9+i)}, s{sT}, {v(O9+i)}")
            for i in range(4): P(f"v_cvt_pk_bf16_f32 {v(S9+i)}, {v(O9+2*i)}, {v(O9+2*i+1)}")
            P(f"s_lshl_b32 s{sT+1}, s{sWv}, 10\ns_add_u32 s{sT+1}, s{sT+1}, {Q9X}")
            P(f"v_lshlrev_b32 {t0}, 4, {l}\nv_add_u32 {t7}, s{sT+1}, {t0}\nv_add_u32 {t0}, {Q9X}, {t0}")
            P(f"ds_write_b128 {t7}, {v(S9,4)}")
            publish(0)
        P.wait_all(vm=False)
        P("s_barrier")
    for kk in range(4):
        P(f"ds_read_b128 {a(Q9F[kk],4)}, {t0} offset:{1024*kk}")
    D = plan["D"]
    def can_issue(i, s_):
        kind, t = seq[i]
        ad = slots[(kind, t)]
        for t2 in range(t):
            if slots[(kind, t2)] == ad:
                freeb = t2 if kind == "K" else t2 + 2
                if freeb > s_ - 1: return False
        if ad < Q9X + 4096 and ad + SLOT > Q9X and s_ < 1: return False
        return True
    for s_ in range(0, 17):
        P.comment(f"H step {s_}")
        if s_ <= 15:
            for kk in range(4):
                P(f"ds_read_b128 {a(F9[kk],4)}, {v(vK9r[kk])} offset:{slots[('K',s_)]}")
        if s_ >= 1:
            so = slots[("V", s_ - 1)] - VB
            for d in range(8):
                P(f"ds_read_b64_tr_b16 {a(FV9[d],2)}, {v(vV9r[so >> 16][d])} offset:{so & 0xffff}")
        extra = plan.get("extra", {}).get(str(s_), 0)
        for _ in range(extra):
            if nxt[0] < len(seq) and (nxt[0] < E or can_issue(nxt[0], s_)): issue_kv(1)
        if s_ <= 15:
            for kk in range(4):
                c = v(S9, 4) if kk else ("0" if s_ == 0 else v(NEGM9, 4))
                P(f"v_mfma_f32_16x16x32_bf16 {v(S9,4)}, {a(F9[kk],4)}, {a(Q9F[kk],4)}, {c}")
        if s_ >= 1:
            for d in range(8):
                c = "0" if s_ == 1 else v(O9 + 4*d, 4)
                P(f"v_mfma_f32_16x16x16_bf16 {v(O9+4*d,4)}, {a(FV9[d],2)}, {v(P9,2)}, {c}")
        if s_ <= 15:
            for I in maxchain(T9, S9, 4): P.add(I)
            if s_ == 0:
                P(f"v_mov_b32 {t0}, {v(T9)}")
                P(f"v_permlane16_swap_b32 {v(T9)}, {t0}")
                P(f"v_max_f32 {v(T9)}, {v(T9)}, {t0}\nv_mov_b32 {t0}, {v(T9)}")
                P(f"v_permlane32_swap_b32 {v(T9)}, {t0}")
                P(f"v_max_f32 {v(T9)}, {v(T9)}, {t0}\nv_ceil_f32 {v(T9)}, {v(T9)}")
                for i in range(4): P(f"v_sub_f32 {v(NEGM9+i)}, 0, {v(T9)}")
                for i in range(4): P(f"v_sub_f32 {v(S9+i)}, {v(S9+i)}, {v(T9)}")
                P(f"v_mov_b32 {v(L9)}, 0")
            else:
                P(f"v_cmp_lt_f32 vcc, {f2u(THR):#x}, {v(T9)}")
                P(f"s_cbranch_vccz {lab}_ok{s_}")
                P(f"s_call_b64 s[{sRet}:{sRet+1}], L_rare9_{name}")
                P(f"{lab}_ok{s_}:")
            for i in range(4): P(f"v_exp_f32 {v(S9+i)}, {v(S9+i)}")
            for i in range(4): P(f"v_add_f32 {v(L9)}, {v(L9)}, {v(S9+i)}")
            for i in range(2): P(f"v_cvt_pk_bf16_f32 {v(P9+i)}, {v(S9+2*i)}, {v(S9+2*i+1)}")
            tl = []
            if s_ + 1 <= 15: tl.append(tidx[("K", s_ + 1)])
            tl.append(tidx[("V", s_)])
            for i in tl:
                assert i < nxt[0], (s_, i, nxt[0])
                publish(i)
                while nxt[0] < len(seq) and nxt[0] <= i + D and (nxt[0] < E or can_issue(nxt[0], s_)):
                    issue_kv(1)
            P.wait_all(vm=False)
            P("s_barrier")
    MRG = 0
    P(f"v_mov_b32 {t0}, {v(L9)}")
    P(f"v_permlane16_swap_b32 {v(L9)}, {t0}")
    P(f"v_add_f32 {v(L9)}, {v(L9)}, {t0}\nv_mov_b32 {t0}, {v(L9)}")
    P(f"v_permlane32_swap_b32 {v(L9)}, {t0}")
    P(f"v_add_f32 {v(NEGM9+1)}, {v(L9)}, {t0}")
    P(f"s_mul_i32 s{sT}, s{sWv}, 8704\ns_add_u32 s{sT}, s{sT}, {MRG}")
    P(f"v_lshlrev_b32 {t7}, 4, {l}\nv_add_u32 {t0}, s{sT}, {t7}")
    for d in range(8):
        P(f"ds_write_b128 {t0}, {v(O9+4*d,4)} offset:{1024*d}")
    P(f"v_lshlrev_b32 {v(T[1])}, 3, {l}\nv_add_u32 {v(T[2])}, s{sT}, {v(T[1])}")
    P(f"ds_write_b64 {v(T[2])}, {v(NEGM9,2)} offset:8192")
    P.wait_all(vm=False)
    P("s_barrier")
    s1 = vV9r[0][0] + (vV9r[0][0] & 1)
    P(f"s_lshl_b32 s{sT}, s{sWv}, 11\ns_add_u32 s{sT}, s{sT}, {MRG}")
    P(f"v_add_u32 {v(T[2])}, s{sT}, {t7}")
    for w in range(4):
        P(f"ds_read_b64 {v(s1+2*w,2)}, {v(T[1])} offset:{MRG+8704*w+8192}")
    for w in range(4):
        for t in range(2):
            P(f"ds_read_b128 {v(O9+8*w+4*t,4)}, {v(T[2])} offset:{8704*w+1024*t}")
    P(f"v_min3_f32 {t0}, {v(s1)}, {v(s1+2)}, {v(s1+4)}\nv_min_f32 {t0}, {t0}, {v(s1+6)}")
    for w in range(4): P(f"v_sub_f32 {v(s1+2*w)}, {t0}, {v(s1+2*w)}")
    for w in range(4): P(f"v_exp_f32 {v(s1+2*w)}, {v(s1+2*w)}")
    P(f"v_mul_f32 {t0}, {v(s1)}, {v(s1+1)}")
    for w in range(1, 4): P(f"v_fmac_f32 {t0}, {v(s1+2*w)}, {v(s1+2*w+1)}")
    P(f"v_rcp_f32 {t0}, {t0}")
    for w in range(4): P(f"v_mul_f32 {v(s1+2*w)}, {v(s1+2*w)}, {t0}")
    for i in range(8):
        P(f"v_mul_f32 {v(O9+i)}, {v(O9+i)}, {v(s1)}")
        for w in range(1, 4):
            P(f"v_fmac_f32 {v(O9+i)}, {v(O9+8*w+i)}, {v(s1+2*w)}")
    for i in range(4):
        P(f"v_cvt_pk_bf16_f32 {v(O9+8+i)}, {v(O9+2*i)}, {v(O9+2*i+1)}")
    P(f"s_lshl_b32 s{sT}, s{sWv}, 10\ns_add_u32 s{sT}, s{sT}, 32768")
    P(f"v_add_u32 {v(T[3])}, s{sT}, {t7}")
    P(f"buffer_store_dwordx4 {v(O9+8,4)}, {v(T[3])}, {srd(sO)}, 0 offen{oflag}")
    P("s_endpgm")
    if emit_rare:
        P(f"L_rare9_{name}:")
        P.fence()
        P(f"v_mov_b32 {t0}, {v(T9)}")
        P(f"v_permlane16_swap_b32 {v(T9)}, {t0}")
        P(f"v_max_f32 {v(T9)}, {v(T9)}, {t0}\nv_mov_b32 {t0}, {v(T9)}")
        P(f"v_permlane32_swap_b32 {v(T9)}, {t0}")
        P(f"v_max_f32 {v(T9)}, {v(T9)}, {t0}\nv_ceil_f32 {v(T9)}, {v(T9)}\nv_max_f32 {v(T9)}, 0, {v(T9)}")
        P(f"v_exp_f32 {t0}, -{v(T9)}")
        for i in range(4): P(f"v_sub_f32 {v(S9+i)}, {v(S9+i)}, {v(T9)}")
        for i in range(4): P(f"v_sub_f32 {v(NEGM9+i)}, {v(NEGM9+i)}, {v(T9)}")
        P(f"v_mul_f32 {v(L9)}, {v(L9)}, {t0}")
        for i in range(32): P(f"v_mul_f32 {v(O9+i)}, {v(O9+i)}, {t0}")
        P("s_nop 3")
        P(f"s_setpc_b64 s[{sRet}:{sRet+1}]")
    if "h" in habl:
        i0 = next(i for i, it in enumerate(P.items) if isinstance(it, tuple) and it[0] == "comment" and it[1] == "H step 1")
        i1 = next(i for i, it in enumerate(P.items) if isinstance(it, tuple) and it[0] == "comment" and it[1] == "H step 16")
        P.items = P.items[:i0] + [it for it in P.items[i0:i1] if isinstance(it, tuple) or not (it.kind in ("mfma", "valu") or it.op.startswith("ds_read") or it.op.startswith("s_cbranch") or it.op.startswith("s_call"))] + P.items[i1:]
    st = {}
    body = P.render(st)
    print(f"{name} H{grp}: vgpr {V.hi} agpr {A.hi} stats {st}")
    return body


DEFAULT_PLANS = [
    {"E": 7, "D": 4, "pre": [["c", 0], ["c", 1], ["c", 2], ["c", 3]],
     "q": [[], [["c", 4]], [["c", 5]], [["c", 6]], [["c", 7]], [["c", 8]], [["c", 9], ["k", 2]], [["k", 1]], [["k", 1]], [["k", 1]]],
     "extra": {"0": 2, "1": 2, "2": 1}},
    {"E": 7, "D": 4, "pre": [["k", 7], ["c", 0], ["c", 1], ["c", 2], ["c", 3]],
     "q": [[], [["c", 4]], [["c", 5]], [["c", 6]], [["c", 7]], [["c", 8]], [["c", 9]], [], [], []],
     "extra": {"0": 2, "1": 2, "2": 1}},
]


def gen_k1(name="attn_kernel", stamps=False, cfg=None):
    cfg = dict(cfg or {})
    cfg.setdefault("plans", DEFAULT_PLANS)
    Stamps.cyc = bool(cfg.get("cyc"))
    slots = default_slots()
    P = Prog()
    P(f"s_cmp_ge_u32 s2, 256\ns_cbranch_scc1 L_end_{name}")
    if stamps:
        P("s_memrealtime s[60:61]")
    P("s_load_dwordx8 s[4:11], s[0:1], 0")
    P("s_load_dwordx8 s[12:19], s[0:1], 32")
    P("v_lshrrev_b32 v1, 6, v0")
    P(f"v_readfirstlane_b32 s{sWv}, v1")
    lh = cfg.get("lh", 2)
    P(f"s_and_b32 s{sT}, s2, 7\ns_lshr_b32 s{sT+1}, s2, 3")
    P(f"s_and_b32 s{sH}, s{sT}, {(32>>lh)-1}\ns_lshl_b32 s{sH}, s{sH}, {lh}\ns_and_b32 s{sB}, s{sT+1}, {(1<<lh)-1}\ns_add_u32 s{sH}, s{sH}, s{sB}")
    P(f"s_lshr_b32 s{sB}, s{sT}, {5-lh}\ns_lshl_b32 s{sB}, s{sB}, {5-lh}\ns_lshr_b32 s{sT+1}, s{sT+1}, {lh}\ns_add_u32 s{sB}, s{sB}, s{sT+1}")
    P(f"s_lshl_b32 s{sBH}, s{sB}, 5\ns_add_u32 s{sBH}, s{sBH}, s{sH}")
    P(f"s_add_u32 s{sG}, s{sB}, s{sH}\ns_and_b32 s{sG}, s{sG}, {cfg.get('gmask', 1)}")
    rb, rh = cfg.get("rb", 3), cfg.get("rh", 5)
    P(f"s_lshr_b32 s{sT}, s{sB}, 1\ns_mul_i32 s{sT}, s{sT}, {rb}\ns_bfe_u32 s{sT+1}, s{sH}, 0x10001\ns_mul_i32 s{sT+1}, s{sT+1}, {rh}\ns_add_u32 s{sT}, s{sT}, s{sT+1}")
    P(f"s_mul_i32 s{sT+1}, s{sT}, 26\ns_lshr_b32 s{sT+1}, s{sT+1}, 8\ns_mul_i32 s{sT+1}, s{sT+1}, 10\ns_sub_u32 s{sRot}, s{sT}, s{sT+1}")
    for i in range(1, 10):
        P(f"s_add_u32 s{sRot+i}, s{sRot+i-1}, 1\ns_cmp_eq_u32 s{sRot+i}, 10\ns_cselect_b32 s{sRot+i}, 0, s{sRot+i}")
    P.wait_all(vm=False)
    P(f"s_lshl_b32 s{sT+4}, s{sBH}, 18")
    P(f"s_add_u32 s{sK}, s6, s{sT+4}\ns_addc_u32 s{sK+1}, s7, 0\ns_mov_b32 s{sK+2}, 0x40000\ns_mov_b32 s{sK+3}, 0x20000")
    P(f"s_add_u32 s{sV}, s8, s{sT+4}\ns_addc_u32 s{sV+1}, s9, 0\ns_mov_b32 s{sV+2}, 0x40000\ns_mov_b32 s{sV+3}, 0x20000")
    P(f"s_mul_i32 s{sT+5}, s{sB}, 184320")
    P(f"s_add_u32 s{sX}, s4, s{sT+5}\ns_addc_u32 s{sX+1}, s5, 0\ns_mov_b32 s{sX+2}, 184320\ns_mov_b32 s{sX+3}, 0x20000")
    P(f"s_lshl_b32 s{sT+5}, s{sH}, 8")
    P(f"s_add_u32 s{sW}, s10, s{sT+5}\ns_addc_u32 s{sW+1}, s11, 0\ns_sub_u32 s{sW+2}, {640*8192}, s{sT+5}\ns_mov_b32 s{sW+3}, 0x20000")
    P(f"s_mul_i32 s{sT+5}, s{sBH}, {O_STRIDE}")
    P(f"s_add_u32 s{sO}, s18, s{sT+5}\ns_addc_u32 s{sO+1}, s19, 0\ns_mov_b32 s{sO+2}, {O_STRIDE}\ns_mov_b32 s{sO+3}, 0x20000")
    if stamps:
        P(f"s_mov_b32 s56, s18\ns_mov_b32 s57, s19\ns_mov_b32 s58, 0x10000000\ns_mov_b32 s59, 0x20000")
    P(f"s_cmp_lt_u32 s{sWv}, 4\ns_cbranch_scc1 L_C_{name}")
    P(f"s_cmp_eq_u32 s{sG}, 0\ns_cbranch_scc0 L_H1_{name}")
    head = P.render()
    body = head + gen_H(name, stamps, cfg, slots, 0, True) + gen_H(name, stamps, cfg, slots, 1, False) + gen_C(name, stamps, cfg, slots)
    return kernel_head(name) + body + kernel_desc(name, 256, 100, ACC_OFF)
```

```python
import re, subprocess, os
FLEX = ("v_exp_f32", "v_max_f32", "v_add_u32", "v_mov_b32", "v_mov_b64", "v_sub_f32", "v_mul_f32", "v_add_f32", "v_rcp_f32", "v_lshlrev_b32", "v_and_b32", "v_xor_b32", "v_ceil_f32", "v_lshrrev_b32")
def size_of(line):
    t = line.split(";")[0].strip()
    if not t or t.endswith(":") or t.startswith("."): return 0
    op = t.split()[0]
    lit = re.search(r"(?<![\w\[:])(0x[0-9a-fA-F]+|\d+)(?![\w\]:])", t[len(op):].split(" offset")[0])
    def has_lit():
        for m in re.finditer(r"(?:^|,)\s*(-?0x[0-9a-fA-F]+|-?\d+)\s*(?=,|$)", t[len(op):]):
            x = int(m.group(1), 0)
            if not (-16 <= x <= 64): return True
        return False
    if op.startswith(("v_mfma", "ds_", "buffer_", "s_load", "s_mem", "v_accvgpr", "v_pk_", "v_cvt_pk", "v_max3", "v_min3", "v_lshl_add", "v_bfe", "v_readlane", "v_writelane", "v_lshl_or", "v_add3")): return 8
    if op.endswith("_e64"): return 8
    if op in ("s_waitcnt", "s_nop", "s_barrier", "s_branch", "s_endpgm", "s_sleep", "s_setprio", "s_call_b64") or op.startswith("s_cbranch"): return 4
    if op.startswith("v_") and re.search(r",\s*-v", t): return 8
    return 8 if has_lit() else 4
def realign(text, mode=1):
    lines = text.split("\n")
    out = []
    par = 0
    n = len(lines)
    for i, ln in enumerate(lines):
        t = ln.strip()
        if t.startswith(".p2align"): par = 0; out.append(ln); continue
        sz = size_of(ln)
        op = t.split()[0] if t else ""
        if sz == 4 and op in FLEX and par == 0:
            j = i + 1
            while j < n and size_of(lines[j]) == 0: j += 1
            if not (j < n and size_of(lines[j]) == 4):
                ln = ln.replace(op, op + "_e64", 1); sz = 8
        out.append(ln)
        par = (par + sz) % 8
    return "\n".join(out)
```

```python
import struct
from asmlib import *


def f2u(x):
    return struct.unpack("<I", struct.pack("<f", x))[0]


QSCALE = 1.4426950408889634 / (128 ** 0.5)
THR = 8.0
SLOT = 16384
CH = 34816
XS = 18432
VB = 65536
O_STRIDE = 36864
PART = 16 << 20
PSTRIDE = 46080
FLAGS = 48 << 20
WOQ = [0, 40960, 81920, 122880]
SPIN_MAX = 50000
MF = "v_mfma_f32_16x16x32_bf16"

v = lambda b, n=1: rng("v", b, n)
a = lambda b, n=1: rng("a", b, n)
srd = lambda b: f"s[{b}:{b+3}]"
sC = 3
sX, sK, sV, sW = 20, 24, 28, 32
sWo, sOg, sP, sF, sOut, sDbg = 4, 8, 12, 16, 36, 96
sWv, sB, sH, sT, sOff, sRet = 40, 41, 42, 43, 50, 52
sGr, sBH, sHt = 95, 94, 93
HM = [1]
sRot = 80

seq = [("K", 0)]
for _s in range(1, 16):
    seq += [("K", _s), ("V", _s - 1)]
seq += [("V", 15)]
tidx = {t: i for i, t in enumerate(seq)}
slots = {}
for _t in range(16):
    slots[("K", _t)] = (_t % 4) * SLOT
    slots[("V", _t)] = VB + (_t % 4) * SLOT
CB = 24576
chbase = lambda ci: CB + ((ci + 2) % 4) * CH
E1, E2 = 27, 28


class Stamps:
    cyc = False

    def __init__(self, P, on, base_sgpr=60):
        self.P = P; self.on = on; self.n = 0; self.base = base_sgpr

    def __call__(self):
        if not self.on:
            return
        assert self.n < 16
        r = self.base + 2 * self.n
        self.P(f"s_memrealtime s[{r}:{r+1}]")
        if Stamps.cyc:
            self.P(f"s_memtime s[{r+2}:{r+3}]")
            self.n += 1
        self.P("s_waitcnt lgkmcnt(0)")
        self.n += 1

    def out(self, P, t0, t7, endlab):
        P.wait_all()
        self()
        P(f"s_lshl_b32 s44, s2, 8\ns_add_u32 s44, s44, {0x8000000}")
        P(f"v_and_b32 {t7}, 0xff, v0\nv_lshlrev_b32 {t0}, 2, {t7}\nv_add_u32 {t0}, s44, {t0}")
        P(f"v_cmp_gt_u32 vcc, {2*self.n}, {t7}")
        P(f"v_mov_b32 {t7}, 0")
        for i in range(2 * self.n):
            P(f"v_writelane_b32 {t7}, s{self.base+i}, {i}")
        P(f"s_and_saveexec_b64 s[44:45], vcc")
        P(f"s_cbranch_execz {endlab}")
        P(f"buffer_store_dword {t7}, {t0}, s[56:59], 0 offen")


def merge(P, mf, fill):
    fill = sorted(fill, key=lambda x: (x[0], x[1]))
    k = 0

    def emit_upto(g):
        nonlocal k
        while k < len(fill) and fill[k][0] <= g:
            it = fill[k][2]
            if isinstance(it, Ins): P.add(it)
            else: it()
            k += 1
    emit_upto(-1)
    for i, (pre, I) in enumerate(mf):
        if pre: P.wait_regs(pre)
        P.add(I)
        emit_upto(i)
    emit_upto(10 ** 9)


class Item:
    __slots__ = ("it", "cost", "lo", "hi", "deps", "gap", "dist")
    def __init__(self, it, cost, lo, hi, deps=(), dist=0):
        self.it = it; self.cost = cost; self.lo = lo; self.hi = hi; self.deps = deps; self.gap = None; self.dist = dist


def pack(mf, streams, fixed, g_first=-1, cap=2):
    n = len(mf)
    used = {}
    out = []
    for g, it, c in fixed:
        used[g] = used.get(g, 0) + c
    heads = [0] * len(streams)
    seqn = [0]
    fx = {}
    for g, it, c in fixed: fx.setdefault(g, []).append(it)
    for g in range(g_first, n):
        rem = cap - used.get(g, 0) - (1 if (g + 1 < n and mf[g + 1][0]) else 0)
        if g == n - 1 or g == g_first: rem = 10 ** 6
        pre = [it for it in fx.get(g, []) if getattr(it, "first", False)]
        for it in pre: out.append((g, seqn[0], it)); seqn[0] += 1
        while True:
            best = None
            for si, st in enumerate(streams):
                if heads[si] >= len(st): continue
                x = st[heads[si]]
                if x.lo > g: continue
                if any(d.gap is None or d.gap + x.dist > g for d in x.deps) and g != n - 1: continue
                forced = x.hi <= g
                if not forced and x.cost > rem: continue
                key = (0 if forced else 1, x.hi)
                if best is None or key < best[0]: best = (key, si, x)
            if best is None: break
            _, si, x = best
            x.gap = g; heads[si] += 1; rem -= x.cost
            out.append((g, seqn[0], x.it)); seqn[0] += 1
        for it in fx.get(g, []):
            if not getattr(it, "first", False): out.append((g, seqn[0], it)); seqn[0] += 1
    assert all(h == len(st) for h, st in zip(heads, streams)), heads
    return out


class Fn:
    def __init__(self, f, first=False): self.f = f; self.first = first
    def __call__(self): self.f()


def late_srds(P, stamps, kv=True):
    if stamps:
        P(f"s_mov_b32 s56, s18\ns_mov_b32 s57, s19\ns_mov_b32 s58, 0x10000000\ns_mov_b32 s59, 0x20000")
    if kv:
        P(f"s_lshl_b32 s{sT+4}, s{sB}, 5\ns_add_u32 s{sT+4}, s{sT+4}, s{sHt}\ns_lshl_b32 s{sT+4}, s{sT+4}, 18")
        P(f"s_add_u32 s{sK}, s6, s{sT+4}\ns_addc_u32 s{sK+1}, s7, 0\ns_mov_b32 s{sK+2}, 0x40000\ns_mov_b32 s{sK+3}, 0x20000")
        P(f"s_add_u32 s{sV}, s8, s{sT+4}\ns_addc_u32 s{sV+1}, s9, 0\ns_mov_b32 s{sV+2}, 0x40000\ns_mov_b32 s{sV+3}, 0x20000")
    P(f"s_lshr_b32 s{sT}, s{sH}, 2\ns_lshl_b32 s{sGr}, s{sT}, 12")
    P(f"s_mul_i32 s{sT+1}, s{sC}, 320\ns_mul_i32 s{sT+5}, s{sB}, 184320\ns_add_u32 s{sT+5}, s{sT+5}, s{sT+1}")
    P(f"s_add_u32 s{sOut}, s14, s{sT+5}\ns_addc_u32 s{sOut+1}, s15, 0\ns_mov_b32 s{sOut+2}, {143*1280+320}\ns_mov_b32 s{sOut+3}, 0x20000")
    P(f"s_mul_i32 s{sT+5}, s{sT}, {(128 if HM[0] else 512)*1280}\ns_add_u32 s{sT+5}, s{sT+5}, s{sT+1}")
    P(f"s_add_u32 s{sWo}, s12, s{sT+5}\ns_addc_u32 s{sWo+1}, s13, 0\ns_mov_b32 s{sWo+2}, {(3*1024+127 if HM[0] else 511)*1280+320}\ns_mov_b32 s{sWo+3}, 0x20000")
    P(f"s_sub_u32 s{sT+5}, s{sBH}, s{sC}\ns_mul_i32 s{sT+5}, s{sT+5}, {O_STRIDE}")
    P(f"s_add_u32 s{sOg}, s18, s{sT+5}\ns_addc_u32 s{sOg+1}, s19, 0\ns_mov_b32 s{sOg+2}, {4*O_STRIDE}\ns_mov_b32 s{sOg+3}, 0x20000")
    P(f"s_lshl_b32 s{sT+5}, s{sB}, 2\ns_add_u32 s{sT+5}, s{sT+5}, s{sC}\ns_mul_i32 s{sT+5}, s{sT+5}, {8*PSTRIDE}\ns_add_u32 s{sT+5}, s{sT+5}, {PART}")
    P(f"s_add_u32 s{sP}, s18, s{sT+5}\ns_addc_u32 s{sP+1}, s19, 0\ns_mov_b32 s{sP+2}, {8*PSTRIDE}\ns_mov_b32 s{sP+3}, 0x20000")
    P(f"s_lshl_b32 s{sT+5}, s{sB}, 15\ns_add_u32 s{sT+5}, s{sT+5}, {FLAGS}")
    P(f"s_add_u32 s{sF}, s18, s{sT+5}\ns_addc_u32 s{sF+1}, s19, 0\ns_mov_b32 s{sF+2}, 32768\ns_mov_b32 s{sF+3}, 0x20000")


def setflag(P, vNew, vAd, ln):
    P(f"s_mov_b64 exec, {1 << ln}")
    P(f"buffer_store_dword {vNew}, {vAd}, {srd(sF)}, s{sGr} offen sc1")
    P("s_mov_b64 exec, -1")


def final_pre(P, l, T, F):
    t0, t6, t7 = v(T[0]), v(T[6]), v(T[7])
    a0, a1 = sT + 3, sT + 4
    P(f"s_lshr_b32 s{sT+6}, s{sH}, 2")
    P(f"s_lshl_b32 s{a0}, s{sWv}, 3\ns_add_u32 s{a0}, s{a0}, s{sT+6}")
    P(f"s_sub_u32 s{a1}, 7, s{sWv}\ns_lshl_b32 s{a1}, s{a1}, 3\ns_add_u32 s{a1}, s{a1}, s{sT+6}")
    P(f"v_lshlrev_b32 {t7}, 4, {l}")
    P(f"v_and_b32 {t0}, 15, {l}\nv_mul_u32_u24 {t0}, 1280, {t0}\nv_bfe_u32 {t6}, {l}, 4, 1\nv_lshl_add_u32 {t0}, {t6}, 5, {t0}")
    P(f"v_lshrrev_b32 {t6}, 5, {l}\nv_lshl_add_u32 {t6}, {t6}, 4, {t0}")
    for r in range(2):
        sp = a0 + r
        P(f"s_cmp_ge_u32 s{sp}, 45\ns_cselect_b32 s{sp}, s{a0}, s{sp}\ns_cselect_b32 s{sT+5}, 0x1000000, 0")
        P(f"s_lshl_b32 s{sT}, s{sp}, 10\ns_add_u32 s{sT}, s{sT}, s{sT+5}")
        P(f"v_add_u32 {v(F[r])}, s{sT}, {t7}")
        P(f"s_mul_i32 s{sT}, s{sp}, 52\ns_lshr_b32 s{sT}, s{sT}, 8")
        P(f"s_mul_i32 s{sT+1}, s{sT}, 5\ns_sub_u32 s{sT+1}, s{sp}, s{sT+1}\ns_lshl_b32 s{sT+1}, s{sT+1}, 6")
        P(f"s_mul_i32 s{sT+2}, s{sT}, 20480\ns_add_u32 s{sT+1}, s{sT+1}, s{sT+2}\ns_add_u32 s{sT+1}, s{sT+1}, s{sT+5}")
        P(f"v_add_u32 {v(F[2+r])}, s{sT+1}, {t6}")
        P(f"s_mul_i32 s{sT}, s{sT}, 86\ns_lshr_b32 s{sT}, s{sT}, 8\ns_lshl_b32 s{sT}, s{sT}, 7")
        P(f"v_mov_b32 {v(F[4+r])}, s{sT}")
    P(f"v_and_b32 {t0}, 8, {l}\nv_cmp_eq_u32 vcc, 0, {t0}")
    P(f"v_cndmask_b32 {v(F[4])}, {v(F[5])}, {v(F[4])}, vcc")
    P(f"s_lshl_b32 s{sT}, s{sC}, 10\ns_add_u32 s{sT}, s{sT}, 512")
    P(f"v_and_b32 {t0}, 7, {l}\nv_lshl_add_u32 {v(F[4])}, {t0}, 12, {v(F[4])}\nv_add_u32 {v(F[4])}, s{sT}, {v(F[4])}")
    P(f"s_mov_b64 exec, 0xffff")
    I_ = Ins(f"buffer_load_dword {v(F[5])}, {v(F[4])}, {srd(sF)}, 0 offen sc1"); I_.wr = []; P.add(I_)
    P(f"s_mov_b64 exec, -1")


def final(P, name, tag, cfg, T, F, R, ST):
    t0 = v(T[0])
    sleep = cfg.get("sleep", 10)
    P(f"s_mov_b32 s{sT+5}, 0")
    P(f"s_mov_b64 exec, 0xffff")
    P(f"L_pl_{tag}_{name}:")
    P(f"buffer_load_dword {t0}, {v(F[4])}, {srd(sF)}, 0 offen sc1")
    P("s_waitcnt vmcnt(0)")
    P(f"v_cmp_eq_u32 vcc, {v(F[5])}, {t0}")
    P(f"s_add_u32 s{sT+5}, s{sT+5}, 1")
    P(f"s_cmp_ge_u32 s{sT+5}, {SPIN_MAX}\ns_cbranch_scc1 L_pld_{tag}_{name}")
    P(f"s_cbranch_vccz L_pld_{tag}_{name}")
    if sleep: P(f"s_sleep {sleep}")
    P(f"s_branch L_pl_{tag}_{name}")
    P(f"L_pld_{tag}_{name}:")
    P(f"s_mov_b64 exec, -1")
    ST()
    P(f"s_mov_b32 s{sOff}, 0")
    for g in range(8):
        for r in range(2):
            P(f"buffer_load_dwordx4 {v(R+40*r+8+4*g,4)}, {v(F[r])}, {srd(sP)}, s{sOff} offen sc1")
        if g < 7: P(f"s_add_u32 s{sOff}, s{sOff}, {PSTRIDE}")
    P(f"s_mov_b32 s{sT}, 0xffff0000")
    for r in range(2):
        B = R + 40 * r
        if r == 1: P(f"s_cmp_lt_u32 s{sWv}, 2\ns_cbranch_scc1 L_fd_{tag}_{name}")
        for g in range(8):
            for i in range(4):
                src = v(B+8+4*g+i)
                if g == 0:
                    P(f"v_lshlrev_b32 {v(B+2*i)}, 16, {src}\nv_and_b32 {v(B+2*i+1)}, s{sT}, {src}")
                else:
                    P(f"v_lshlrev_b32 {t0}, 16, {src}\nv_and_b32 {src}, s{sT}, {src}")
                    P(f"v_add_f32 {v(B+2*i)}, {v(B+2*i)}, {t0}\nv_add_f32 {v(B+2*i+1)}, {v(B+2*i+1)}, {src}")
        for i in range(4):
            P(f"v_cvt_pk_bf16_f32 {v(B+i)}, {v(B+2*i)}, {v(B+2*i+1)}")
        P(f"buffer_store_dwordx4 {v(B,4)}, {v(F[2+r])}, {srd(sOut)}, 0 offen")
    P(f"L_fd_{tag}_{name}:")


def gen_C(name, stamps, cfg):
    LEAD = cfg.get("lead", 10)
    P = Prog()
    V = Alloc("v", 1, 256)
    A = Alloc("a", 0, 256)
    O = V.get(96, 4)
    S = [V.get(24, 4), V.get(24, 4)]
    PB = [V.get(12, 4), V.get(12, 4)]
    NEGM = V.get(12, 4)
    L = V.get(12, 4)
    TM = V.get(2, 2)
    T = [V.get() for _ in range(8)]
    vKr = [V.get() for _ in range(4)]
    vVr = [V.get() for _ in range(8)]
    vLane = V.get()
    vSn = V.get(); vPol = V.get(); vPa = V.get(); vNew = V.get()
    FF = [V.get() for _ in range(6)]
    vStq = [V.get() for _ in range(3)]; vSp = V.get(); vRb = [V.get(), V.get()]; vR = [V.get(), V.get()]
    pool = list(range(S[1], S[1] + 24))
    vXr = [pool.pop(0) for _ in range(2)]
    vWr = [pool.pop(0) for _ in range(8)]
    NFR = 16
    FR = [A.get(4) for _ in range(NFR)]
    XB = [A.get(4) for _ in range(12)]
    QF = A.get(48, 4)
    ONES = A.get(4)
    Ot = lambda dt, qt: O + 4 * (3 * dt + qt)
    St = lambda b, kt, qt: S[b] + 4 * (3 * kt + qt)
    Qf = lambda qt, kk: QF + 4 * (4 * qt + kk)
    if cfg.get("hst"): stamps = False
    ST = Stamps(P, stamps); ST.n = 1
    l = v(vLane)
    P(f"L_C_{name}:")
    if cfg.get("cpf", 1):
        P(f"s_getpc_b64 s[{sT+1}:{sT+2}]")
        P(f"L_pc_{name}:")
        P(f"s_lshr_b32 s{sT}, s2, 3\ns_mul_i32 s{sT}, s{sT}, 3\ns_add_u32 s{sT}, s{sT}, s{sWv}\ns_lshl_b32 s{sT}, s{sT}, 9")
        P(f"v_and_b32 {v(T[0])}, 63, v0\nv_lshlrev_b32 {v(T[0])}, 3, {v(T[0])}\nv_add_u32 {v(T[0])}, s{sT}, {v(T[0])}")
        P(f"v_min_u32 {v(T[0])}, L_cend_{name}-{name}-8, {v(T[0])}")
        P(f"s_sub_u32 s{sT+1}, s{sT+1}, L_pc_{name}-{name}\ns_subb_u32 s{sT+2}, s{sT+2}, 0")
        P(f"v_mov_b32 {v(TM+1)}, s{sT+2}")
        P(f"v_add_co_u32 {v(TM)}, vcc, s{sT+1}, {v(T[0])}")
        P(f"v_addc_co_u32 {v(TM+1)}, vcc, 0, {v(TM+1)}, vcc")
        I_ = Ins(f"global_load_dword {v(vPol)}, {v(TM,2)}, off"); I_.wr = []; P.add(I_)
    late_srds(P, stamps, False)
    P(f"v_and_b32 {l}, 63, v0")
    l15, l4, rr, cc, g1 = (v(T[i]) for i in range(1, 6))
    t0, t6, t7 = v(T[0]), v(T[6]), v(T[7])
    P(f"s_add_u32 s{sT}, s{sC}, 1\nv_add_u32 {t0}, s{sT}, {l}\nv_and_b32 {t0}, 3, {t0}\nv_lshlrev_b32 {t0}, 10, {t0}")
    P(f"s_lshl_b32 s{sT}, s{sWv}, 7\nv_and_b32 {t6}, 4, {l}\nv_lshl_add_u32 {t0}, {t6}, 7, {t0}\nv_add_u32 {v(vPa)}, s{sT}, {t0}")
    P(f"s_mov_b64 exec, 0x8f")
    I_ = Ins(f"buffer_load_dword {v(vSn)}, {v(vPa)}, {srd(sF)}, s{sGr} offen sc1"); I_.wr = []; P.add(I_)
    P(f"s_mov_b64 exec, -1")
    P(f"v_and_b32 {l15}, 15, {l}\nv_lshrrev_b32 {l4}, 4, {l}\nv_bfe_u32 {rr}, {l}, 2, 2\nv_and_b32 {cc}, 3, {l}")
    P(f"v_bfe_u32 {g1}, {l}, 4, 1\nv_lshlrev_b32 {g1}, 1, {g1}")
    P(f"s_mul_i32 s{sT}, s{sWv}, 6144\ns_add_u32 s{sT}, s{sT}, {CB+2*CH}")
    P(f"v_lshrrev_b32 {t6}, 1, {l15}\nv_lshlrev_b32 {t7}, 7, {l15}\nv_add_u32 {t7}, s{sT}, {t7}")
    for k in range(2):
        P(f"v_add_u32 {t0}, {4*k}, {l4}\nv_xor_b32 {t0}, {t0}, {t6}")
        P(f"v_lshl_add_u32 {v(vXr[k])}, {t0}, 4, {t7}")
    P(f"v_lshrrev_b32 {t0}, 1, {cc}\nv_lshlrev_b32 {t7}, 2, {rr}\nv_xor_b32 {t0}, {t0}, {t7}\nv_xor_b32 {t0}, {t0}, {g1}")
    P(f"v_lshl_add_u32 {t7}, {l4}, 3, {rr}\nv_lshlrev_b32 {t7}, 8, {t7}\nv_and_b32 {t6}, 1, {cc}\nv_lshl_add_u32 {t7}, {t6}, 3, {t7}\nv_add_u32 {t7}, {XS+CB+2*CH}, {t7}")
    for d in range(8):
        P(f"v_xor_b32 {t6}, {2*d}, {t0}\nv_lshl_add_u32 {v(vWr[d])}, {t6}, 4, {t7}")
    P(f"v_lshl_add_u32 {t7}, {l4}, 2, {rr}\nv_lshlrev_b32 {t7}, 8, {t7}\nv_and_b32 {t6}, 1, {cc}\nv_lshl_add_u32 {t7}, {t6}, 3, {t7}\nv_add_u32 {t7}, {VB}, {t7}")
    for d in range(8):
        P(f"v_xor_b32 {t6}, {2*d}, {t0}\nv_lshl_add_u32 {v(vVr[d])}, {t6}, 4, {t7}")
    P(f"v_lshrrev_b32 {t6}, 5, {l}\nv_add_u32 {t6}, {t6}, {g1}")
    for kk in range(4):
        P(f"v_add_u32 {t0}, {4*kk}, {t6}\nv_xor_b32 {t0}, {t0}, {l15}\nv_lshlrev_b32 {t0}, 4, {t0}\nv_lshl_add_u32 {v(vKr[kk])}, {l15}, 8, {t0}")
    P(f"v_cmp_eq_u32 vcc, 0, {cc}\nv_mov_b32 {t0}, 0x3f803f80")
    P(f"v_cndmask_b32 {t0}, 0, {t0}, vcc")
    for i in range(4): P(f"v_accvgpr_write_b32 {a(ONES+i)}, {t0}")
    P(f"s_mov_b32 s54, {f2u(QSCALE):#x}\ns_mov_b32 s55, {f2u(QSCALE):#x}")
    final_pre(P, l, T, FF)
    sVal, sDone, sPo, sPen, sLd, sPb, sMode, sGr2, sOwn, sRdy, sSt = 20, 21, 22, 25, 26, 28, 29, 32, 34, 35, 51
    P(f"s_mul_i32 s{sT}, s{sWv}, 12288\ns_mul_i32 s{sT+1}, s{sWv}, 15360")
    P(f"v_lshlrev_b32 {t7}, 4, {l}\nv_add_u32 {v(vStq[0])}, s{sT}, {t7}\nv_add_u32 {v(vStq[1])}, 4096, {v(vStq[0])}\nv_add_u32 {v(vStq[2])}, 8192, {v(vStq[0])}")
    P(f"v_add_u32 {v(vSp)}, s{sT+1}, {t7}")
    P(f"v_lshrrev_b32 {t0}, 2, {l}\nv_mul_u32_u24 {t0}, 320, {t0}\nv_and_b32 {t6}, 3, {l}\nv_lshl_add_u32 {t0}, {t6}, 3, {t0}")
    P(f"v_bfe_u32 {t6}, {l}, 4, 1\nv_lshl_add_u32 {v(vRb[0])}, {t6}, 5, {t0}\nv_xor_b32 {t6}, 1, {t6}\nv_lshl_add_u32 {v(vRb[1])}, {t6}, 5, {t0}")
    P(f"v_mov_b32 {v(vR[0])}, {v(vRb[0])}\nv_mov_b32 {v(vR[1])}, {v(vRb[1])}")
    for p in range(3):
        P(f"s_add_u32 s{sPo+p}, s{sC}, {p+1}\ns_and_b32 s{sPo+p}, s{sPo+p}, 3\ns_mul_i32 s{sPo+p}, s{sPo+p}, {O_STRIDE}")
    P(f"s_mul_i32 s{sOwn}, s{sC}, {O_STRIDE}\ns_lshr_b32 s{sPb}, s{sH}, 2\ns_mul_i32 s{sPb}, s{sPb}, {PSTRIDE}")
    P(f"s_mov_b32 s{sDone}, 0\ns_mov_b32 s{sVal}, 0\ns_mov_b32 s{sRdy}, 0\ns_mov_b32 s{sMode}, 0\ns_mov_b32 s{sSt}, 0")
    sDl, sCnt = 30, 31
    P(f"s_mov_b32 s{sDl}, {-2*CH & 0xffffffff:#x}\ns_mov_b32 s{sCnt}, 0")
    for i in range(48): P(f"v_mov_b64 {v(O+2*i,2)}, 0")
    mark = lambda m: Fn(lambda: P.comment("@@" + m))

    mf = []
    RD, EX, CV, MX = [], [], [], []
    fixed = []
    frc = [0]
    def nfr():
        r = FR[frc[0] % NFR]; frc[0] += 1
        return r
    def bar(extra=None, drain=True):
        def f():
            if drain: P.wait_all(vm=False)
            P("s_barrier")
            if extra: extra()
        return Fn(f, True)
    LMIN, LMAX = cfg.get("lmin", 18), cfg.get("lmax", 27)
    assert LMAX <= 3 * (NFR - 1) - 1
    def rd(j, minr, tx, lmin=None):
        RD.append(Item(Ins(tx), 1, max(j - LMAX, minr), max(j - (lmin or LMIN), minr)))

    fixed.append((-1, bar(ST), 0))
    fixed.append((-1, mark("Q0"), 0))
    minr = -1
    loops = {}
    for ci in range(10):
        off = (ci % 2) * CH
        if ci == 2: loops["Q"] = (0, len(RD), 0, len(mf))
        xb = lambda k32, qt: XB[(6 * ci + 3 * k32 + qt) % 12]
        if ci < 9: order = [(k32, dt) for k32 in range(2) for dt in range(8)]
        else: order = [(k32, 2*j + t) for j in range(4) for k32 in range(2) for t in range(2)]
        seen = set()
        for (k32, dt) in order:
            j = len(mf)
            if k32 not in seen:
                seen.add(k32)
                for qt in range(3):
                    rd(j, minr, f"ds_read_b128 {a(xb(k32,qt),4)}, {v(vXr[k32])} offset:{off + 2048*qt}")
            fr = nfr()
            for r_ in range(2):
                rd(j, minr, f"ds_read_b64_tr_b16 {a(fr+2*r_,2)}, {v(vWr[dt])} offset:{off + (32*k32+4*r_)*256}")
            for qt in range(3):
                c = v(Ot(dt, qt), 4)
                mf.append(([a(fr, 4)] + [a(xb(k32, q_), 4) for q_ in range(3)] if qt == 0 else [], Ins(f"{MF} {v(Ot(dt,qt),4)}, {a(fr,4)}, {a(xb(k32,qt),4)}, {c}")))
            if ci == 9 and k32 == 1 and dt % 2 == 1:
                jj = dt // 2
                its = []
                for qt in range(3):
                    ta, tb = Ot(dt - 1, qt), Ot(dt, qt)
                    for b_ in (ta, ta + 2, tb, tb + 2):
                        its.append(f"v_pk_mul_f32 {v(b_,2)}, {v(b_,2)}, s[54:55]")
                    its += [f"v_cvt_pk_bf16_f32 {v(ta)}, {v(ta)}, {v(ta+1)}", f"v_cvt_pk_bf16_f32 {v(ta+1)}, {v(ta+2)}, {v(ta+3)}",
                            f"v_cvt_pk_bf16_f32 {v(tb)}, {v(tb)}, {v(tb+1)}", f"v_cvt_pk_bf16_f32 {v(tb+1)}, {v(tb+2)}, {v(tb+3)}"]
                for qt in range(3):
                    ta, tb = Ot(dt - 1, qt), Ot(dt, qt)
                    its += [f"v_permlane16_swap_b32 {v(ta)}, {v(tb)}", f"v_permlane16_swap_b32 {v(ta+1)}, {v(tb+1)}"]
                for qt in range(3):
                    ta, tb = Ot(dt - 1, qt), Ot(dt, qt)
                    for i, r_ in enumerate((ta, ta + 1, tb, tb + 1)):
                        its.append(f"v_accvgpr_write_b32 {a(Qf(qt,jj)+i)}, {v(r_)}")
                e = len(mf) - 1
                dl = 480 + 6 * jj - 2
                for k_, tx in enumerate(its):
                    CV.append(Item(Ins(tx), 1, e + 3, max(e + 3, dl)))
        gb = len(mf) - 1 - (LMIN - cfg.get("qbo", 5))
        fixed.append((gb, bar(), 2))
        minr = gb
        if ci % 2 == 1 and ci < 9:
            for r_ in vXr + vWr:
                RD.append(Item(Ins(f"v_add_u32 {v(r_)}, s{sDl}, {v(r_)}"), 1, -1, gb - 1))
            RD.append(Item(Ins(f"s_sub_u32 s{sDl}, 0, s{sDl}"), 1, -1, gb - 1))
            e = len(mf) - 1
            fixed.append((e - 1, Ins(f"s_add_u32 s{sCnt}, s{sCnt}, 1"), 1))
            fixed.append((e, Ins(f"s_cmp_lt_u32 s{sCnt}, 4"), 1))
            fixed.append((e, Ins(f"s_cbranch_scc1 L_qloop_{name}"), 1))
            fixed.append((e, mark(f"Q{(ci+1)//2}"), 0))
    g_q = len(mf) - 1
    for i in range(48): CV.append(Item(Ins(f"v_mov_b64 {v(O+2*i,2)}, 0"), 1, g_q, g_q + 46))
    for i in range(6): CV.append(Item(Ins(f"v_mov_b64 {v(L+2*i,2)}, 0"), 1, g_q, g_q + 46))
    def qdone():
        P(f"s_mov_b32 s{sCnt}, 0")
        ST()
    fixed.append((g_q, Fn(qdone), 2))

    def rowmax(dst, b, qt):
        s0, s1 = St(b, 0, qt), St(b, 1, qt)
        P(f"v_max3_f32 {dst}, {v(s0)}, {v(s0+1)}, {v(s0+2)}\nv_max3_f32 {dst}, {dst}, {v(s0+3)}, {v(s1)}")
        P(f"v_max3_f32 {dst}, {dst}, {v(s1+1)}, {v(s1+2)}\nv_max_f32 {dst}, {dst}, {v(s1+3)}")
        P(f"v_mov_b32 {t0}, {dst}\nv_permlane16_swap_b32 {dst}, {t0}\nv_max_f32 {dst}, {dst}, {t0}")
        P(f"v_mov_b32 {t0}, {dst}\nv_permlane32_swap_b32 {dst}, {t0}\nv_max_f32 {dst}, {dst}, {t0}\nv_ceil_f32 {dst}, {dst}")

    def init_main():
        for qt in range(3):
            d = v(T[1 + qt])
            rowmax(d, 0, qt)
            for i in range(4): P(f"v_sub_f32 {v(NEGM+4*qt+i)}, 0, {d}")
        for qt in range(3):
            d = v(T[1 + qt])
            for kt in range(2):
                for i in range(4): P(f"v_sub_f32 {v(St(0,kt,qt)+i)}, {v(St(0,kt,qt)+i)}, {d}")

    bar_gap = {-1: minr}
    stubs = {}
    def iteration(u, has_qk, has_pv, has_sm, do_bar, sumfirst=False):
        odd = (u % 2 != 0)
        s_ = (u + 1) // 2
        g0 = len(mf)
        minr = bar_gap.get(s_ - 1, -1)
        if has_qk:
            un = u + 1; b = un & 1
            for kk in range(4):
                for kt in range(2):
                    fr = nfr(); j = len(mf)
                    rd(j, minr, f"ds_read_b128 {a(fr,4)}, {v(vKr[kk])} offset:{slots[('K',s_ % 4)] + b*8192 + kt*4096}")
                    for qt in range(3):
                        c = v(St(b, kt, qt), 4) if kk else ("0" if un == 0 else v(NEGM + 4*qt, 4))
                        mf.append(([a(fr, 4)] if qt == 0 else [], Ins(f"{MF} {v(St(b,kt,qt),4)}, {a(fr,4)}, {a(Qf(qt,kk),4)}, {c}")))
        pv0 = len(mf)
        if has_pv:
            un = u - 1; b = un & 1; tv = un // 2
            so = slots[("V", tv % 4)] - VB
            for qt in range(3 if sumfirst else 0):
                mf.append(([], Ins(f"{MF} {v(L+4*qt,4)}, {a(ONES,4)}, {v(PB[b]+4*qt,4)}, {v(L+4*qt,4)}")))
            for dt in range(8):
                fr = nfr(); j = len(mf)
                for r_ in range(2):
                    rd(j, minr, f"ds_read_b64_tr_b16 {a(fr+2*r_,2)}, {v(vVr[dt])} offset:{so + (32*b+16*r_)*256}")
                for qt in range(3):
                    mf.append(([a(fr, 4)] if qt == 0 else [], Ins(f"{MF} {v(Ot(dt,qt),4)}, {a(fr,4)}, {v(PB[b]+4*qt,4)}, {v(Ot(dt,qt),4)}")))
            for qt in range(0 if sumfirst else 3):
                mf.append(([], Ins(f"{MF} {v(L+4*qt,4)}, {a(ONES,4)}, {v(PB[b]+4*qt,4)}, {v(L+4*qt,4)}")))
        g1_ = len(mf) - 1
        span = g1_ - g0
        if has_sm:
            b = u & 1
            k_ = 0
            for qt in range(3):
                for kt in range(2):
                    s0 = St(b, kt, qt)
                    for h in range(2):
                        es = []
                        for z in range(2):
                            hi = g0 + min(span - 2, 6 + (k_ * (span - 8)) // 24 + cfg.get("exsl", 4)); k_ += 1
                            es.append(Item(Ins(f"v_exp_f32 {v(s0+2*h+z)}, {v(s0+2*h+z)}"), 2, g0, hi))
                        EX.extend(es)
                        CV.append(Item(Ins(f"v_cvt_pk_bf16_f32 {v(PB[b]+4*qt+2*kt+h)}, {v(s0+2*h)}, {v(s0+2*h+1)}"), 1, g0, g1_, es, 1))
        for z in range(cfg.get("diagpad", 0) if (has_qk and has_pv) else 0):
            fixed.append((g0 + 4 + 6 * z, Ins("s_nop 7"), 0))
        if do_bar:
            gb = g1_ - 14 if has_pv else g1_ - 11
            fixed.append((gb, bar(None, False), 1))
            bar_gap[s_] = g1_ - 14 if has_pv else gb
        if has_qk:
            if u == -1:
                fixed.append((g1_, Fn(init_main), 2))
            else:
                sb = S[(u + 1) & 1]
                mc = [f"v_max3_f32 {v(TM)}, {v(sb)}, {v(sb+1)}, {v(sb+2)}"]
                for i in range(3, 23, 2):
                    mc.append(f"v_max3_f32 {v(TM)}, {v(TM)}, {v(sb+i)}, {v(sb+i+1)}")
                mc.append(f"v_max_f32 {v(TM)}, {v(TM)}, {v(sb+23)}")
                mc.append(f"v_cmp_lt_f32 vcc, {f2u(THR):#x}, {v(TM)}")
                lo = min(pv0 + 1, g1_)
                for k_, tx in enumerate(mc):
                    MX.append(Item(Ins(tx), 1, lo, max(lo, g1_ - 1 - (12 - k_) // 2)))
                lab = f"L_ok_{name}_{'p' if u == 0 else (u - 1) % 8}"
                fixed.append((g1_, Ins(f"s_cbranch_vccnz {lab}s"), 1))
                fixed.append((g1_, Ins(f"{lab}:"), 0))
                stubs[lab] = f"L_rare{'A' if odd else 'B'}_{name}"
        return g0, g1_
    def group_waits(mf, WG):
        idx = [i for i, (pre, I) in enumerate(mf) if pre]
        for k in range(0, len(idx), WG):
            pp = []
            for q in idx[k:k + WG]: pp += mf[q][0]
            mf[idx[k]] = (pp, mf[idx[k]][1])
            for q in idx[k + 1:k + WG]: mf[q] = ([], mf[q][1])
    for u in range(-1, 26):
        if u == 1: la = (len(RD), len(mf))
        if u == 9: loops["A"] = (la[0], len(RD), la[1], len(mf))
        g0, g1_ = iteration(u, True, u >= 1, u >= 0, u % 2 == 0)
        if u >= 0 and u % 8 == 0:
            if u > 0:
                fixed.append((g1_, Ins(f"s_branch L_aloop_{name}"), 1))
            fixed.append((g1_, mark(f"A{u//8}"), 0))
        if u > 0 and u % 8 == 6:
            fixed.append((g1_ - 2, Ins(f"s_add_u32 s{sCnt}, s{sCnt}, 1"), 1))
            fixed.append((g1_ - 1, Ins(f"s_cmp_eq_u32 s{sCnt}, 4"), 1))
            fixed.append((g1_, Ins(f"s_cbranch_scc1 L_tail_{name}"), 1))
            fixed.append((g1_, mark(f"X{u//8}"), 0))
    group_waits(mf, 4)
    pack(mf, [RD, EX, CV, MX], fixed)
    for (r0, r1, g_0, g_1) in (loops["Q"], loops["A"]):
        n = r1 - r0
        for i in range(n):
            rel = RD[r1 + i].gap - g_1
            x = RD[r0 + i]
            if rel >= 0: x.lo = max(x.lo, g_0)
            else: x.hi = min(x.hi, g_0 - 1); x.lo = min(x.lo, x.hi)
    for st_ in (RD, EX, CV, MX):
        for x in st_: x.gap = None
    merge(P, mf, pack(mf, [RD, EX, CV, MX], fixed))
    cut = next(i for i, it in enumerate(P.items) if isinstance(it, tuple) and it[0] == "comment" and it[1] == "@@X2")
    del P.items[cut + 1:]
    P(f"L_tail_{name}:")
    mf.clear(); RD.clear(); EX.clear(); CV.clear(); MX.clear(); fixed.clear(); bar_gap.clear()
    frc[0] = 8
    ACC = O + 48
    assert ACC + 120 <= NEGM
    At = lambda t, qt: ACC + 4 * (3 * t + qt)
    Ow = lambda qt, j: O + 4 * (3 * j + qt)
    PF0 = 64
    assert FR[-1] + 4 <= PF0
    pf = lambda p, qt, j: a(PF0 + 48*p + 4*(4*qt + j), 4)
    pol = lambda: P(f"s_mov_b64 exec, 7\nbuffer_load_dword {v(vPol)}, {v(vPa)}, {srd(sF)}, s{sGr} offen sc1\ns_mov_b64 exec, -1")
    ga, _ = iteration(31, False, True, True, False)
    g0, g1_ = iteration(32, False, True, False, False, True)
    fixed.append((ga + 6, Fn(pol), 2))
    fixed.append((g1_ - 5, bar(None, False), 1))
    BIG = 10 ** 6
    ZR = []
    for r_ in list(range(S[0], S[0] + 24, 2)) + list(range(S[1], S[1] + 24, 2)) + list(range(PB[0], PB[0] + 12, 2)):
        ZR.append(Item(Ins(f"v_mov_b64 {v(r_,2)}, 0"), 1, g0, BIG))
    for qt in range(3):
        CV.append(Item(Ins(f"v_rcp_f32 {v(L+4*qt)}, {v(L+4*qt)}"), 2, g0 + 5, g0 + 8))
    for j in range(4):
        lo = min(g0 + 3 + 6 * j + 5 + 3, g1_)
        for qt in range(3):
            for t_ in (Ot(2*j, qt), Ot(2*j + 1, qt)):
                for h in range(2):
                    CV.append(Item(Ins(f"v_pk_mul_f32 {v(t_+2*h,2)}, {v(t_+2*h,2)}, {v(L+4*qt,2)} op_sel_hi:[1,0]"), 1, lo, BIG - 1))
        for qt in range(3):
            ta, tb = Ot(2*j, qt), Ot(2*j + 1, qt)
            d = Ow(qt, j)
            for tx in (f"v_cvt_pk_bf16_f32 {v(d)}, {v(ta)}, {v(ta+1)}", f"v_cvt_pk_bf16_f32 {v(d+1)}, {v(ta+2)}, {v(ta+3)}",
                       f"v_cvt_pk_bf16_f32 {v(d+2)}, {v(tb)}, {v(tb+1)}", f"v_cvt_pk_bf16_f32 {v(d+3)}, {v(tb+2)}, {v(tb+3)}",
                       f"buffer_store_dwordx4 {v(d,4)}, {v(vStq[qt])}, {srd(sOg)}, s{sOwn} offen offset:{1024*j} sc1"):
                CV.append(Item(Ins(tx), 1, lo, BIG - 1))
    group_waits(mf, 2)
    merge(P, mf, pack(mf, [RD, EX, CV, MX, ZR], fixed))
    ST()

    STo = ST
    if cfg.get("ast") or cfg.get("cyc") or cfg.get("qst"): ST = lambda: None
    sleep = cfg.get("sleep", 4)
    svc = lambda: P(f"s_call_b64 s[{sLd}:{sLd+1}], L_svc_{name}")
    P("s_waitcnt vmcnt(12)")
    P(f"v_cmp_ne_u32 vcc, {v(vSn)}, {v(vPol)}")
    P(f"v_add_u32 {v(vNew)}, 1, {v(vSn)}")
    P(f"s_and_b32 s{sPen}, vcc_lo, 7")
    svc()
    ST()
    P.items.append(("PREREAD",))
    for r_ in list(range(O + 48, O + 96, 2)) + list(range(PB[1], PB[1] + 12, 2)):
        P(f"v_mov_b64 {v(r_,2)}, 0")
    P(f"s_mov_b32 s{sT+5}, 0")
    nm = [(j, 2*k + t) for k in range(5) for j in range(4) for t in range(2)]
    def outp(k):
        its = []
        for qt in range(3):
            ta, tb = At(2*k, qt), At(2*k + 1, qt)
            its += [f"v_cvt_pk_bf16_f32 {v(ta)}, {v(ta)}, {v(ta+1)}", f"v_cvt_pk_bf16_f32 {v(ta+1)}, {v(ta+2)}, {v(ta+3)}",
                    f"v_cvt_pk_bf16_f32 {v(ta+2)}, {v(tb)}, {v(tb+1)}", f"v_cvt_pk_bf16_f32 {v(ta+3)}, {v(tb+2)}, {v(tb+3)}"]
        for qt in range(3):
            ta = At(2*k, qt)
            its += [f"v_permlane16_swap_b32 {v(ta)}, {v(ta+2)}", f"v_permlane16_swap_b32 {v(ta+1)}, {v(ta+3)}",
                    f"s_add_u32 s{sOff}, s{sPb}, {(5*qt + k)*1024}",
                    f"buffer_store_dwordx4 {v(ta,4)}, {v(vSp)}, {srd(sP)}, s{sOff} offen sc1"]
        return its
    NPRE = 12
    def gemm_items():
        mf = []; RDb = []
        frc[0] = 0
        for (j, t) in nm:
            fr = nfr(); jx = len(mf)
            for r_ in range(2):
                RDb.append(Item(Ins(f"ds_read_b64_tr_b16 {a(fr+2*r_,2)}, {v(vR[t&1])} offset:{(32*j+16*r_)*320 + 64*(t//2)}"), 1, max(jx - 21, 0), max(jx - 15, 0)))
            for qt in range(3):
                mf.append(([a(fr, 4)] if qt == 0 else [], Ins(f"{MF} {v(At(t,qt),4)}, {a(fr,4)}, {v(Ow(qt,j),4)}, {v(At(t,qt),4)}")))
        group_waits(mf, 2)
        return mf, RDb
    def preread():
        for x in gemm_items()[1][:NPRE]: P.add(x.it)
    hooks = []
    def hook(g):
        def f():
            P(f"s_cbranch_scc0 L_hs{g}_{name}\nL_hr{g}_{name}:")
        hooks.append(g)
        return Fn(f)
    P(f"L_gemm_{name}:")
    mf, RDb = gemm_items()
    fx = []
    for g in cfg.get("hooks", [3, 18, 36, 54, 72, 90, 108]):
        fx.append((g, Ins(f"s_cmp_eq_u32 s{sRdy}, 7"), 1))
        fx.append((g, hook(g), 1))
    merge(P, mf, pack(mf, [RDb[NPRE:]], fx))
    P(f"s_cmp_eq_u32 s{sMode}, 0\ns_cbranch_scc0 L_disp_{name}")
    P(f"s_mov_b32 s{sMode}, 1")
    if cfg.get("bst"): ST()
    P("s_barrier")
    ST()
    P(f"L_disp_{name}:")
    P(f"s_andn2_b32 s{sT}, s{sRdy}, s{sDone}")
    P(f"s_cbranch_scc0 L_wait_{name}")
    P(f"s_ff1_i32_b32 s{sT}, s{sT}")
    P(f"s_mul_i32 s{sT+1}, s{sT}, 40960\ns_add_u32 s{sT+1}, s{sT+1}, 40960")
    assert WOQ == [0, 40960, 81920, 122880]
    P(f"v_add_u32 {v(vR[0])}, s{sT+1}, {v(vRb[0])}\nv_add_u32 {v(vR[1])}, s{sT+1}, {v(vRb[1])}")
    P(f"s_bitset1_b32 s{sDone}, s{sT}")
    preread()
    P(f"s_cmp_eq_u32 s{sT}, 1\ns_cbranch_scc1 L_c1_{name}")
    P(f"s_cmp_eq_u32 s{sT}, 2\ns_cbranch_scc1 L_c2_{name}")
    for p in range(3):
        P(f"L_c{p}_{name}:")
        for j in range(4):
            for qt in range(3):
                for i in range(4):
                    P(f"v_accvgpr_read_b32 {v(Ow(qt,j)+i)}, {a(PF0 + 48*p + 4*(4*qt+j) + i)}")
        P(f"s_cmp_eq_u32 s{sDone}, 7\ns_cbranch_scc0 L_gemm_{name}")
        if p < 2: P(f"s_branch L_last_{name}")
    P(f"L_last_{name}:")
    mf, RDb = gemm_items()
    OUT = []
    for k in range(5):
        for tx in outp(k): OUT.append(Item(Ins(tx), 1, min(24*k + 23 + 3, 119), 10 ** 6))
    merge(P, mf, pack(mf, [RDb[NPRE:], OUT], []))
    ST()
    P("s_waitcnt vmcnt(0)")
    setflag(P, v(vNew), v(vPa), 7)
    final(P, name, "C", cfg, T, FF, O, ST)
    if stamps:
        P(f"s_cmp_lg_u32 s{sWv}, 0\ns_cbranch_scc1 L_end_{name}")
        STo.out(P, t0, t7, f"L_end_{name}")
    P(f"L_end_{name}:\ns_endpgm")
    P(f"L_wait_{name}:")
    P("s_waitcnt vmcnt(0)")
    P(f"s_call_b64 s[{sGr2}:{sGr2+1}], L_tick_{name}")
    P(f"s_add_u32 s{sT+5}, s{sT+5}, 1\ns_cmp_lt_u32 s{sT+5}, {SPIN_MAX}\ns_cbranch_scc1 L_disp_{name}")
    P(f"s_andn2_b32 s{sPen}, 7, s{sVal}")
    P(f"s_branch L_disp_{name}")
    ret2 = f"s_setpc_b64 s[{sGr2}:{sGr2+1}]"
    for g in hooks:
        P(f"L_hs{g}_{name}:")
        P(f"s_call_b64 s[{sGr2}:{sGr2+1}], L_tick_{name}\ns_branch L_hr{g}_{name}")
    P(f"L_tick_{name}:")
    P(f"s_cmp_eq_u32 s{sRdy}, 7\ns_cbranch_scc1 L_tr_{name}")
    P(f"s_cmp_lg_u32 s{sPen}, 0\ns_cbranch_scc1 L_ts_{name}")
    P(f"s_getreg_b32 s{sT}, hwreg(HW_REG_IB_STS)")
    P(f"s_bitcmp1_b32 s{sSt}, 0\ns_cbranch_scc1 L_t1_{name}")
    P(f"s_bfe_u32 s{sT+1}, s{sT}, 0x20016\ns_lshl_b32 s{sT+1}, s{sT+1}, 4\ns_and_b32 s{sT}, s{sT}, 15\ns_or_b32 s{sT}, s{sT}, s{sT+1}")
    P(f"s_bcnt1_i32_b32 s{sT+1}, s{sVal}\ns_mul_i32 s{sT+1}, s{sT+1}, 12")
    P(f"s_cmp_gt_u32 s{sT}, s{sT+1}\ns_cbranch_scc1 L_tr_{name}")
    P(f"s_cmp_eq_u32 s{sT}, 0\ns_cselect_b32 s{sRdy}, s{sVal}, s{sRdy}")
    setflag(P, v(vNew), v(vPa), 3)
    P(f"s_bitset1_b32 s{sSt}, 0")
    P(f"s_branch L_tp_{name}")
    P(f"L_t1_{name}:")
    P(f"s_and_b32 s{sT}, s{sT}, 0xc0000f\ns_cbranch_scc1 L_tr_{name}")
    P(f"s_mov_b32 s{sRdy}, s{sVal}")
    P(f"s_bitcmp1_b32 s{sSt}, 1\ns_cbranch_scc0 L_tp_{name}")
    P(f"s_bitset0_b32 s{sSt}, 1")
    P(f"v_cmp_ne_u32 vcc, {v(vSn)}, {v(vPol)}")
    P(f"s_and_b32 s{sPen}, vcc_lo, 7\ns_andn2_b32 s{sPen}, s{sPen}, s{sVal}")
    P(f"s_cbranch_scc1 L_ts_{name}")
    P(f"L_tp_{name}:")
    P(f"s_cmp_eq_u32 s{sVal}, 7\ns_cbranch_scc1 L_tr_{name}")
    pol()
    P(f"s_bitset1_b32 s{sSt}, 1")
    P(f"L_tr_{name}:")
    P(ret2)
    P(f"L_ts_{name}:")
    P(f"s_mov_b64 s[{sLd}:{sLd+1}], s[{sGr2}:{sGr2+1}]")
    P(f"s_branch L_svc_{name}")
    P("s_waitcnt vmcnt(0)")
    P(f"L_svc_{name}:")
    P(f"s_cmp_eq_u32 s{sPen}, 0\ns_cbranch_scc1 L_svd_{name}")
    P(f"s_bitcmp1_b32 s{sPen}, 0\ns_cbranch_scc1 L_sv0_{name}")
    P(f"s_bitcmp1_b32 s{sPen}, 1\ns_cbranch_scc1 L_sv1_{name}")
    for p in (2, 1, 0):
        P(f"L_sv{p}_{name}:")
        P(f"s_bitset0_b32 s{sPen}, {p}\ns_bitset1_b32 s{sVal}, {p}")
        for j in range(4):
            for qt in range(3):
                P(f"buffer_load_dwordx4 {pf(p,qt,j)}, {v(vStq[qt])}, {srd(sOg)}, s{sPo+p} offen offset:{1024*j} sc1")
        if p: P(f"s_setpc_b64 s[{sLd}:{sLd+1}]")
    P(f"L_svd_{name}:")
    P(f"s_setpc_b64 s[{sLd}:{sLd+1}]")
    P("s_waitcnt vmcnt(0)")

    def rare(lab, b):
        pb = PB[b ^ 1]
        P(f"{lab}:")
        P.fence()
        d, f = v(T[1]), v(T[2])
        for qt in range(3):
            rowmax(d, b, qt)
            P(f"v_max_f32 {d}, 0, {d}\nv_exp_f32 {f}, -{d}")
            for kt in range(2):
                for i in range(4): P(f"v_sub_f32 {v(St(b,kt,qt)+i)}, {v(St(b,kt,qt)+i)}, {d}")
            for i in range(4): P(f"v_sub_f32 {v(NEGM+4*qt+i)}, {v(NEGM+4*qt+i)}, {d}")
            P(f"v_mul_f32 {v(L+4*qt)}, {v(L+4*qt)}, {f}")
            for dt in range(8):
                for i in range(4): P(f"v_mul_f32 {v(Ot(dt,qt)+i)}, {v(Ot(dt,qt)+i)}, {f}")
            for i in range(4):
                r_ = v(pb + 4*qt + i)
                P(f"v_lshlrev_b32 {v(T[3])}, 16, {r_}\nv_and_b32 {v(T[4])}, 0xffff0000, {r_}")
                P(f"v_mul_f32 {v(T[3])}, {v(T[3])}, {f}\nv_mul_f32 {v(T[4])}, {v(T[4])}, {f}")
                P(f"v_cvt_pk_bf16_f32 {r_}, {v(T[3])}, {v(T[4])}")
        P("s_nop 3")
        P(f"s_setpc_b64 s[{sRet}:{sRet+1}]")
    for lab, tgt in stubs.items():
        P(f"{lab}s:\ns_call_b64 s[{sRet}:{sRet+1}], {tgt}\ns_branch {lab}")
    P(f"L_cend_{name}:")
    rare(f"L_rareA_{name}", 0)
    rare(f"L_rareB_{name}", 1)
    k_ = P.items.index(("PREREAD",))
    P.items[k_:k_ + 1] = [x.it for x in gemm_items()[1][:NPRE]]
    st = {}
    body = P.render(st)
    def seg(m0, m1):
        i0 = body.index(f"  ; @@{m0}\n") + len(f"  ; @@{m0}\n")
        return body[i0:body.index(f"  ; @@{m1}\n")]
    import re as _re
    strip = lambda t: _re.sub(r"  ; @@\w+\n", "", t)
    open("lin.s", "w").write(body)
    for k in range(1, 4):
        assert seg("Q0", "Q1") == seg(f"Q{k}", f"Q{k+1}"), f"qloop body {k} differs"
    assert strip(seg("A0", "A1")) == strip(seg("A1", "A2")), "aloop body differs"
    assert seg("A0", "X0") == seg("A2", "X2"), "aloop exit prefix differs"
    h = lambda m: body.index(f"  ; @@{m}\n")
    body = (body[:h("Q0")] + f".p2align 6\nL_qloop_{name}:\n" + seg("Q0", "Q1") + seg("Q4", "A0") + f".p2align 6\nL_aloop_{name}:\n" + seg("A0", "A1")
            + body[h("X2"):])
    if cfg.get("align", 1):
        from align import realign
        body = realign(".p2align 3\n" + body)
    print(f"C: vgpr {V.hi} agpr {A.hi} lines {body.count(chr(10))}")
    return body


def gen_H(name, stamps, cfg):
    kvflag = cfg.get("kvflag", " nt")
    P = Prog()
    V = Alloc("v", 1, 256)
    R = V.get(80, 4)
    T = [V.get() for _ in range(8)]
    vLane = V.get()
    vXd = [V.get() for _ in range(4)]
    vWd = [V.get() for _ in range(4)]
    vKd = [V.get() for _ in range(4)]
    vVd = [V.get() for _ in range(2)]
    vD = [V.get() for _ in range(5)]
    DUM = V.get(4)
    vWrt = [V.get() for _ in range(3)]
    FF = [V.get() for _ in range(6)]
    l = v(vLane)
    l15, l4 = v(T[1]), v(T[2])
    t0, t6, t7 = v(T[0]), v(T[6]), v(T[7])
    P(f"v_and_b32 {l}, 63, v0")
    P(f"v_and_b32 {l15}, 15, {l}\nv_lshrrev_b32 {l4}, 4, {l}")
    P(f"v_lshrrev_b32 {t7}, 3, {l}\nv_mul_u32_u24 {t7}, 1280, {t7}")
    P(f"v_xor_b32 {t0}, {l4}, {l}\nv_and_b32 {t0}, 7, {t0}")
    P(f"v_lshl_add_u32 {v(vXd[0])}, {t0}, 4, {t7}")
    P(f"v_xor_b32 {t0}, 4, {t0}\nv_lshl_add_u32 {v(vXd[1])}, {t0}, 4, {t7}\nv_add_u32 {v(vXd[1])}, 9216, {v(vXd[1])}")
    P(f"v_add_u32 {v(vXd[2])}, 18432, {v(vXd[0])}\nv_add_u32 {v(vXd[3])}, 18432, {v(vXd[1])}")
    P(f"v_lshlrev_b32 {t0}, 2, {l4}\nv_xor_b32 {t0}, {t0}, {l15}\nv_lshlrev_b32 {t7}, 13, {l4}")
    P(f"v_lshl_add_u32 {v(vWd[0])}, {t0}, 4, {t7}\nv_add_u32 {v(vWd[1])}, 31744, {v(vWd[0])}")
    P(f"v_xor_b32 {t6}, 2, {t0}\nv_lshl_add_u32 {t6}, {t6}, 4, {t7}\nv_add_u32 {v(vWd[2])}, {2*31744}, {t6}\nv_add_u32 {v(vWd[3])}, {3*31744}, {t6}")

    occ = []
    def free_ev(lo, hi):
        e = -1
        for (s0, s1, ev) in occ:
            if s0 < hi and lo < s1: e = max(e, ev)
        return e
    Qu = []
    def add(lds, n, pre, ins, need):
        Qu.append(dict(lds=lds, pre=pre, ins=ins, need=need, ok=(free_ev(lds, lds + 1024*n) if lds is not None else -1)))
    for ci in range(10):
        base = chbase(ci)
        for g in range(5):
            n = 4 if g < 4 else 2
            add(base + 4096*g, n, (f"s_lshl_b32 s{sOff}, s{sRot+ci}, 7" if g == 0 else f"s_add_u32 s{sOff}, s{sOff}, 40960 ; {ci} {g}"),
                [f"buffer_load_dwordx4 {v(vXd[j])}, {srd(sX)}, s{sOff} offen offset:{1024*j} lds" for j in range(n)], ci)
        for g in range(4):
            add(base + XS + 4096*g, 4, (f"s_lshl_b32 s{sOff}, s{sRot+ci}, 19" if g == 0 else f"s_add_u32 s{sOff}, s{sOff}, 131072 ; {ci} {g}"),
                [f"buffer_load_dwordx4 {v(vWd[j])}, {srd(sW)}, s{sOff} offen offset:{1024*j} lds" for j in range(4)], ci)
        occ.append((base, base + CH, ci + 1))
    nq = len(Qu)
    sKr = 92
    def kvpre(t, g):
        if g: return f"s_add_u32 s{sOff}, s{sOff}, 4096 ; {t} {g}"
        return f"s_add_u32 s{sOff}, s{sKr}, {t*SLOT}\ns_and_b32 s{sOff}, s{sOff}, 0x3ffff"
    order = list(seq)
    early = cfg.get("early", [])
    pfi = 0
    for i, (kind, t) in enumerate(order):
        ad = slots[(kind, t)]
        need = (10 + t) if kind == "K" else (11 + t)
        for g in range(4):
            vo = lambda j: v(vKd[j]) if kind == 'K' else v(vVd[j & 1])
            sr = srd(sK if kind == 'K' else sV)
            if i in early:
                rb = 64 * early.index(i) + 16 * g
                a = (lambda b_, n_: rng("a", b_, n_)) if rb < 256 else (lambda b_, n_: rng("v", b_ - 128, n_))
                assert free_ev(ad, ad + SLOT) < need
                add(None, 4, kvpre(t, g),
                    [f"buffer_load_dwordx4 {a(rb+4*j,4)}, {vo(j)}, {sr}, s{sOff} offen offset:{1024*j}{kvflag}" for j in range(4)], need)
                Qu[-1]["wr"] = [f"ds_write_b128 {v(vWrt[(ad + 4096*g) >> 16])}, {a(rb+4*j,4)} offset:{((ad + 4096*g) & 0xffff) + 1024*j}" for j in range(4)]
            else:
                add(ad + 4096*g, 4, kvpre(t, g),
                    [f"buffer_load_dwordx4 {vo(j)}, {sr}, s{sOff} offen offset:{1024*j}{kvflag} lds" for j in range(4)], need)
            Qu[-1]["tile"] = i
        occ.append((ad, ad + SLOT, (11 + t) if kind == "K" else min(12 + t, E1)))
        for _ in range(cfg.get("pfn", 1)):
          if i >= cfg.get("pf0", 6) and pfi < 20:
            add(None, 1, f"s_add_u32 s{sOff}, s{sRot+4}, {(pfi//5)*16*1280}",
                [f"buffer_load_dwordx4 {v(DUM,4)}, {v(vD[pfi%5])}, {srd(sWo)}, s{sOff} offen{cfg.get('pfflag','')}"], None)
            pfi += 1
    mix = cfg.get("mix", {})
    if mix:
        assert V.hi <= 128
        newq = []
        moved = set()
        for ci in range(-1, 10):
            if ci >= 0: newq += Qu[9*ci:9*ci + 9]
            for tl in mix.get(str(ci), []):
                newq += [g for g in Qu[nq:] if g.get("tile") == tl]; moved.add(tl)
        rest = [g for g in Qu[nq:] if g.get("tile") not in moved]
        nq = len(newq)
        Qu[:] = newq + rest
    nkv = len(Qu)
    wq = []
    for q in range(4):
        for e in range(40):
            wq.append((q, e, free_ev(WOQ[q] + 1024*e, WOQ[q] + 1024*(e+1))))
    wq.sort(key=lambda x: (max(x[2], 24 if x[0] == 0 else cfg.get('wosort', 25)), x[0], x[1]))
    for q, e, _ in wq:
        add(WOQ[q] + 1024*e, 1, f"s_add_u32 s{sOff}, s{sRot+q}, {(e//5)*16*1280}",
            [f"buffer_load_dwordx4 {v(vD[e%5])}, {srd(sWo)}, s{sOff} offen{cfg.get('woflag','')} lds"], E1 if q == 0 else E2)

    issued = [0]; cnt = [0]; waited = [0]
    ends = []
    lastpre = [None]
    def issue_one():
        g = Qu[issued[0]]
        if g["lds"] is not None: P(f"s_mov_b32 m0, {g['lds']}")
        if g["pre"] != lastpre[0]: P(g["pre"]); lastpre[0] = g["pre"]
        for tx in g["ins"]:
            if cfg.get("nokv") and nq + 40 <= issued[0] < nkv: continue
            P(tx, tok=issued[0])
            if g["lds"] is None: P.items[-1].wr = []
        cnt[0] += len(g["ins"]); ends.append(cnt[0]); issued[0] += 1
    def refill(e):
        while issued[0] < len(Qu):
            g = Qu[issued[0]]
            W = cfg.get("Wq", 60) if issued[0] < nq else (cfg.get("W", 48) if (issued[0] < nkv and g["lds"] is not None) else (cfg.get("Wwo", 32) if e < E1 else 60))
            if e == 0: W = cfg.get("W0", 60)
            if g["ok"] >= e: break
            if issued[0] >= nq and e < cfg.get("kvstart", 0): break
            if cnt[0] + len(g["ins"]) - waited[0] > W: break
            issue_one()
    def wait_group(i):
        if ends[i] > waited[0]:
            P.wait_tok(i); waited[0] = ends[i]

    refill(0)
    hst = cfg.get("hst") if stamps else None
    late_srds(P, bool(hst))
    HS = Stamps(P, bool(hst)); HS.n = 1
    lastpre[0] = None
    P(f"s_mul_i32 s{sKr}, s{sBH}, {cfg.get('kvrot', 0)}\ns_and_b32 s{sKr}, s{sKr}, 15\ns_lshl_b32 s{sKr}, s{sKr}, 14")
    P(f"v_lshlrev_b32 {v(vWrt[0])}, 4, {l}\nv_add_u32 {v(vWrt[1])}, 65536, {v(vWrt[0])}\nv_add_u32 {v(vWrt[2])}, 131072, {v(vWrt[0])}")
    P(f"v_lshlrev_b32 {t7}, 8, {l4}")
    for n in range(4):
        P(f"v_add_u32 {t0}, {4*n}, {l4}\nv_xor_b32 {t0}, {t0}, {l15}\nv_lshl_add_u32 {v(vKd[n])}, {t0}, 4, {t7}")
    P(f"v_lshlrev_b32 {t0}, 2, {l4}\nv_xor_b32 {t0}, {t0}, {l15}")
    for n in range(2):
        P(f"v_xor_b32 {t6}, {2*n}, {t0}\nv_lshl_add_u32 {v(vVd[n])}, {t6}, 4, {t7}")
    for i in range(5):
        P(f"v_add_u32 {t0}, {64*i}, {l}")
        P(f"v_mul_u32_u24 {t7}, 3277, {t0}\nv_lshrrev_b32 {t7}, 16, {t7}")
        P(f"v_mul_u32_u24 {t6}, 20, {t7}\nv_sub_u32 {t6}, {t0}, {t6}")
        P(f"v_bfe_u32 {t0}, {t7}, 2, 1\nv_lshlrev_b32 {t0}, 1, {t0}\nv_xor_b32 {t6}, {t6}, {t0}")
        P(f"v_mul_u32_u24 {t7}, 1280, {t7}\nv_lshl_add_u32 {v(vD[i])}, {t6}, 4, {t7}")
    final_pre(P, l, T, FF)
    for e in range(0, E2 + 1):
        P.comment(f"H epoch {e}")
        if e == 11:
            for q in range(4):
                P(f"s_add_u32 s{sRot+q}, s{sC}, {q}\ns_and_b32 s{sRot+q}, s{sRot+q}, 3\ns_mul_i32 s{sRot+q}, s{sRot+q}, {(1024 if HM[0] else 128)*1280}")
            P(f"s_lshr_b32 s{sRot+4}, s{sB}, 1\ns_mul_i32 s{sRot+4}, s{sRot+4}, {(1024 if HM[0] else 128)*1280}\ns_and_b32 s{sRot+5}, s{sB}, 1\ns_mul_i32 s{sRot+5}, s{sRot+5}, {64*1280}\ns_add_u32 s{sRot+4}, s{sRot+4}, s{sRot+5}")
        refill(e)
        needs = [i for i, g in enumerate(Qu) if g["need"] == e]
        for i in needs:
            if "wr" in Qu[i] and i < issued[0] and ends[i] <= waited[0]:
                for tx in Qu[i]["wr"]: P(tx)
                Qu[i]["done"] = 1
        if needs:
            last = max(needs)
            ah = cfg.get("ahead", {}).get(str(e), 0)
            if ah: last = min(last + ah, nq - 1) if last < nq else last
            i = 0
            while i <= last:
                if i >= issued[0]:
                    raise RuntimeError(f"epoch {e}: group {i} not issued")
                if ends[i] > waited[0] and (i == last or ends[i] - waited[0] >= cfg.get('wgran', 8)):
                    wait_group(i)
                    refill(e)
                if Qu[i]["need"] == e and "wr" in Qu[i] and "done" not in Qu[i]:
                    wait_group(i)
                    for tx in Qu[i]["wr"]: P(tx)
                i += 1
            if any("wr" in Qu[i] for i in needs): P.wait_all(vm=False)
        if hst and -e in hst: HS()
        P("s_barrier")
        if hst and e in hst: HS()
    assert issued[0] == len(Qu)
    final(P, name, "H", cfg, T, FF, R, lambda: None)
    if hst:
        assert HS.n <= 9
        P(f"v_and_b32 v0, 63, v0")
        HS.out(P, t0, t7, f"L_end_{name}")
    P("s_endpgm")
    st = {}
    body = P.render(st)
    print(f"H: vgpr {V.hi} stats {st}")
    return body


def gen_k1(name, stamps=False, cfg=None):
    cfg = dict(cfg or {})
    Stamps.cyc = bool(cfg.get("cyc"))
    P = Prog()
    P(f"s_cmp_ge_u32 s2, 256\ns_cbranch_scc1 L_end_{name}")
    P("s_load_dwordx8 s[4:11], s[0:1], 0")
    P("s_load_dwordx8 s[12:19], s[0:1], 32")
    if stamps:
        P("s_memrealtime s[60:61]")
    P("v_lshrrev_b32 v1, 6, v0")
    P(f"s_and_b32 s{sT}, s2, 7\ns_bfe_u32 s{sC}, s2, 0x20003\ns_lshr_b32 s{sB}, s2, 5")
    P(f"v_readfirstlane_b32 s{sWv}, v1")
    P(f"s_lshl_b32 s{sH}, s{sT}, 2\ns_add_u32 s{sH}, s{sH}, s{sC}")
    P(f"s_lshl_b32 s{sBH}, s{sB}, 5\ns_add_u32 s{sBH}, s{sBH}, s{sH}")
    HM[0] = cfg.get("hm", 1)
    P(f"s_and_b32 s{sHt}, s2, 31" if HM[0] else f"s_mov_b32 s{sHt}, s{sH}")
    P(f"s_cmp_lt_u32 s{sWv}, 3\ns_cbranch_scc1 L_Cw_{name}")
    P(f"s_mul_i32 s{sT}, s{sB}, 5\ns_lshr_b32 s{sT}, s{sT}, 2\ns_mul_i32 s{sT+1}, s{sC}, 5\ns_lshr_b32 s{sT+1}, s{sT+1}, 1\ns_add_u32 s{sT}, s{sT}, s{sT+1}")
    P(f"s_sub_u32 s{sT+1}, s{sT}, 10\ns_cmp_ge_u32 s{sT}, 10\ns_cselect_b32 s{sRot}, s{sT+1}, s{sT}")
    for i in range(1, 10):
        P(f"s_add_u32 s{sRot+i}, s{sRot+i-1}, 1\ns_cmp_eq_u32 s{sRot+i}, 10\ns_cselect_b32 s{sRot+i}, 0, s{sRot+i}")
    P(f"s_mul_i32 s{sT+5}, s{sB}, 184320\ns_lshl_b32 s{sT+6}, s{sHt}, 8")
    P.wait_all(vm=False)
    P(f"s_add_u32 s{sX}, s4, s{sT+5}\ns_addc_u32 s{sX+1}, s5, 0\ns_mov_b32 s{sX+2}, 184320\ns_mov_b32 s{sX+3}, 0x20000")
    P(f"s_add_u32 s{sW}, s10, s{sT+6}\ns_addc_u32 s{sW+1}, s11, 0\ns_sub_u32 s{sW+2}, {640*8192}, s{sT+6}\ns_mov_b32 s{sW+3}, 0x20000")
    head = P.render()
    cw = f"L_Cw_{name}:\n  s_waitcnt lgkmcnt(0)\n"
    body = head + gen_H(name, stamps, cfg) + cw + gen_C(name, stamps, cfg)
    return kernel_head(name) + body + kernel_desc(name, 512, 100, 256)
```

```python
import sys, json
from k4 import gen_k1
NAME = "standalone__gqa_block_cached__near_ridge_kernel"
def build(out, stamps=False, cfg=None):
    hdr = open("standalone__gqa_block_cached__near_ridge.s.ref").read().split("\n")
    hdr = [l for l in hdr if l.startswith(";") and "@launch" not in l]
    s = "\n".join(hdr) + "\n"
    s += "; @launch grid=(256,1,1) block=(256,1,1) lds=163840\n"
    s += '.amdgcn_target "amdgcn-amd-amdhsa--gfx950"\n.text\n'
    s += gen_k1(NAME, stamps, cfg)
    open(out, "w").write(s)
if __name__ == "__main__":
    a = sys.argv[1:]
    if not a:
        build("v9_st.s", True)
        build("standalone__gqa_block_cached__near_ridge.s", False)
    for i in range(0, len(a), 2):
        build(f"dev/{a[i]}.s", True, json.loads(a[i+1]))
```

```python
import struct
from asmlib import *


def f2u(x):
    return struct.unpack("<I", struct.pack("<f", x))[0]


QSCALE = 1.4426950408889634 / (128 ** 0.5)
THR = 8.0
SLOT = 16384
CH = 34816
XS = 18432
VB = 65536
O_STRIDE = 36864
PART = 16 << 20
PSTRIDE = 46080
FLAGS = 48 << 20
WOQ = [0, 40960, 81920, 122880]
SPIN_MAX = 50000
MF = "v_mfma_f32_16x16x32_bf16"

v = lambda b, n=1: rng("v", b, n)
a = lambda b, n=1: rng("a", b, n)
srd = lambda b: f"s[{b}:{b+3}]"
sC = 3
sX, sK, sV, sW = 20, 24, 28, 32
sWo, sOg, sP, sF, sOut, sDbg = 4, 8, 12, 16, 36, 96
sWv, sB, sH, sT, sOff, sRet = 40, 41, 42, 43, 50, 52
sGr, sBH, sHt = 95, 94, 93
HM = [1]
sRot = 80

seq = [("K", 0)]
for _s in range(1, 16):
    seq += [("K", _s), ("V", _s - 1)]
seq += [("V", 15)]
tidx = {t: i for i, t in enumerate(seq)}
slots = {}
for _t in range(16):
    slots[("K", _t)] = (_t % 4) * SLOT
    slots[("V", _t)] = VB + (_t % 4) * SLOT
CB = 24576
chbase = lambda ci: CB + ((ci + 2) % 4) * CH
E1, E2 = 27, 28


class Stamps:
    cyc = False

    def __init__(self, P, on, base_sgpr=60):
        self.P = P; self.on = on; self.n = 0; self.base = base_sgpr

    def __call__(self):
        if not self.on:
            return
        assert self.n < 16
        r = self.base + 2 * self.n
        self.P(f"s_memrealtime s[{r}:{r+1}]")
        if Stamps.cyc:
            self.P(f"s_memtime s[{r+2}:{r+3}]")
            self.n += 1
        self.P("s_waitcnt lgkmcnt(0)")
        self.n += 1

    def out(self, P, t0, t7, endlab):
        P.wait_all()
        self()
        P(f"s_lshl_b32 s44, s2, 8\ns_add_u32 s44, s44, {0x8000000}")
        P(f"v_and_b32 {t7}, 0xff, v0\nv_lshlrev_b32 {t0}, 2, {t7}\nv_add_u32 {t0}, s44, {t0}")
        P(f"v_cmp_gt_u32 vcc, {2*self.n}, {t7}")
        P(f"v_mov_b32 {t7}, 0")
        for i in range(2 * self.n):
            P(f"v_writelane_b32 {t7}, s{self.base+i}, {i}")
        P(f"s_and_saveexec_b64 s[44:45], vcc")
        P(f"s_cbranch_execz {endlab}")
        P(f"buffer_store_dword {t7}, {t0}, s[56:59], 0 offen")


def merge(P, mf, fill):
    fill = sorted(fill, key=lambda x: (x[0], x[1]))
    k = 0

    def emit_upto(g):
        nonlocal k
        while k < len(fill) and fill[k][0] <= g:
            it = fill[k][2]
            if isinstance(it, Ins): P.add(it)
            else: it()
            k += 1
    emit_upto(-1)
    for i, (pre, I) in enumerate(mf):
        if pre: P.wait_regs(pre)
        P.add(I)
        emit_upto(i)
    emit_upto(10 ** 9)


class Item:
    __slots__ = ("it", "cost", "lo", "hi", "deps", "gap", "dist")
    def __init__(self, it, cost, lo, hi, deps=(), dist=0):
        self.it = it; self.cost = cost; self.lo = lo; self.hi = hi; self.deps = deps; self.gap = None; self.dist = dist


def pack(mf, streams, fixed, g_first=-1, cap=2):
    n = len(mf)
    used = {}
    out = []
    for g, it, c in fixed:
        used[g] = used.get(g, 0) + c
    heads = [0] * len(streams)
    seqn = [0]
    fx = {}
    for g, it, c in fixed: fx.setdefault(g, []).append(it)
    for g in range(g_first, n):
        rem = cap - used.get(g, 0) - (1 if (g + 1 < n and mf[g + 1][0]) else 0)
        if g == n - 1 or g == g_first: rem = 10 ** 6
        pre = [it for it in fx.get(g, []) if getattr(it, "first", False)]
        for it in pre: out.append((g, seqn[0], it)); seqn[0] += 1
        while True:
            best = None
            for si, st in enumerate(streams):
                if heads[si] >= len(st): continue
                x = st[heads[si]]
                if x.lo > g: continue
                if any(d.gap is None or d.gap + x.dist > g for d in x.deps) and g != n - 1: continue
                forced = x.hi <= g
                if not forced and x.cost > rem: continue
                key = (0 if forced else 1, x.hi)
                if best is None or key < best[0]: best = (key, si, x)
            if best is None: break
            _, si, x = best
            x.gap = g; heads[si] += 1; rem -= x.cost
            out.append((g, seqn[0], x.it)); seqn[0] += 1
        for it in fx.get(g, []):
            if not getattr(it, "first", False): out.append((g, seqn[0], it)); seqn[0] += 1
    assert all(h == len(st) for h, st in zip(heads, streams)), heads
    return out


class Fn:
    def __init__(self, f, first=False): self.f = f; self.first = first
    def __call__(self): self.f()


def late_srds(P, stamps, kv=True):
    if stamps:
        P(f"s_mov_b32 s56, s18\ns_mov_b32 s57, s19\ns_mov_b32 s58, 0x10000000\ns_mov_b32 s59, 0x20000")
    if kv:
        P(f"s_lshl_b32 s{sT+4}, s{sB}, 5\ns_add_u32 s{sT+4}, s{sT+4}, s{sHt}\ns_lshl_b32 s{sT+4}, s{sT+4}, 18")
        P(f"s_add_u32 s{sK}, s6, s{sT+4}\ns_addc_u32 s{sK+1}, s7, 0\ns_mov_b32 s{sK+2}, 0x40000\ns_mov_b32 s{sK+3}, 0x20000")
        P(f"s_add_u32 s{sV}, s8, s{sT+4}\ns_addc_u32 s{sV+1}, s9, 0\ns_mov_b32 s{sV+2}, 0x40000\ns_mov_b32 s{sV+3}, 0x20000")
    P(f"s_lshr_b32 s{sT}, s{sH}, 2\ns_lshl_b32 s{sGr}, s{sT}, 12")
    P(f"s_mul_i32 s{sT+1}, s{sC}, 320\ns_mul_i32 s{sT+5}, s{sB}, 184320\ns_add_u32 s{sT+5}, s{sT+5}, s{sT+1}")
    P(f"s_add_u32 s{sOut}, s14, s{sT+5}\ns_addc_u32 s{sOut+1}, s15, 0\ns_mov_b32 s{sOut+2}, {143*1280+320}\ns_mov_b32 s{sOut+3}, 0x20000")
    P(f"s_mul_i32 s{sT+5}, s{sT}, {(128 if HM[0] else 512)*1280}\ns_add_u32 s{sT+5}, s{sT+5}, s{sT+1}")
    P(f"s_add_u32 s{sWo}, s12, s{sT+5}\ns_addc_u32 s{sWo+1}, s13, 0\ns_mov_b32 s{sWo+2}, {(3*1024+127 if HM[0] else 511)*1280+320}\ns_mov_b32 s{sWo+3}, 0x20000")
    P(f"s_sub_u32 s{sT+5}, s{sBH}, s{sC}\ns_mul_i32 s{sT+5}, s{sT+5}, {O_STRIDE}")
    P(f"s_add_u32 s{sOg}, s18, s{sT+5}\ns_addc_u32 s{sOg+1}, s19, 0\ns_mov_b32 s{sOg+2}, {4*O_STRIDE}\ns_mov_b32 s{sOg+3}, 0x20000")
    P(f"s_lshl_b32 s{sT+5}, s{sB}, 2\ns_add_u32 s{sT+5}, s{sT+5}, s{sC}\ns_mul_i32 s{sT+5}, s{sT+5}, {8*PSTRIDE}\ns_add_u32 s{sT+5}, s{sT+5}, {PART}")
    P(f"s_add_u32 s{sP}, s18, s{sT+5}\ns_addc_u32 s{sP+1}, s19, 0\ns_mov_b32 s{sP+2}, {8*PSTRIDE}\ns_mov_b32 s{sP+3}, 0x20000")
    P(f"s_lshl_b32 s{sT+5}, s{sB}, 15\ns_add_u32 s{sT+5}, s{sT+5}, {FLAGS}")
    P(f"s_add_u32 s{sF}, s18, s{sT+5}\ns_addc_u32 s{sF+1}, s19, 0\ns_mov_b32 s{sF+2}, 32768\ns_mov_b32 s{sF+3}, 0x20000")


def setflag(P, vNew, vAd, ln):
    P(f"s_mov_b64 exec, {1 << ln}")
    P(f"buffer_store_dword {vNew}, {vAd}, {srd(sF)}, s{sGr} offen sc1")
    P("s_mov_b64 exec, -1")


def final_pre(P, l, T, F):
    t0, t6, t7 = v(T[0]), v(T[6]), v(T[7])
    a0, a1 = sT + 3, sT + 4
    P(f"s_lshr_b32 s{sT+6}, s{sH}, 2")
    P(f"s_lshl_b32 s{a0}, s{sWv}, 3\ns_add_u32 s{a0}, s{a0}, s{sT+6}")
    P(f"s_sub_u32 s{a1}, 7, s{sWv}\ns_lshl_b32 s{a1}, s{a1}, 3\ns_add_u32 s{a1}, s{a1}, s{sT+6}")
    P(f"v_lshlrev_b32 {t7}, 4, {l}")
    P(f"v_and_b32 {t0}, 15, {l}\nv_mul_u32_u24 {t0}, 1280, {t0}\nv_bfe_u32 {t6}, {l}, 4, 1\nv_lshl_add_u32 {t0}, {t6}, 5, {t0}")
    P(f"v_lshrrev_b32 {t6}, 5, {l}\nv_lshl_add_u32 {t6}, {t6}, 4, {t0}")
    for r in range(2):
        sp = a0 + r
        P(f"s_cmp_ge_u32 s{sp}, 45\ns_cselect_b32 s{sp}, s{a0}, s{sp}\ns_cselect_b32 s{sT+5}, 0x1000000, 0")
        P(f"s_lshl_b32 s{sT}, s{sp}, 10\ns_add_u32 s{sT}, s{sT}, s{sT+5}")
        P(f"v_add_u32 {v(F[r])}, s{sT}, {t7}")
        P(f"s_mul_i32 s{sT}, s{sp}, 52\ns_lshr_b32 s{sT}, s{sT}, 8")
        P(f"s_mul_i32 s{sT+1}, s{sT}, 5\ns_sub_u32 s{sT+1}, s{sp}, s{sT+1}\ns_lshl_b32 s{sT+1}, s{sT+1}, 6")
        P(f"s_mul_i32 s{sT+2}, s{sT}, 20480\ns_add_u32 s{sT+1}, s{sT+1}, s{sT+2}\ns_add_u32 s{sT+1}, s{sT+1}, s{sT+5}")
        P(f"v_add_u32 {v(F[2+r])}, s{sT+1}, {t6}")
        P(f"s_mul_i32 s{sT}, s{sT}, 86\ns_lshr_b32 s{sT}, s{sT}, 8\ns_lshl_b32 s{sT}, s{sT}, 7")
        P(f"v_mov_b32 {v(F[4+r])}, s{sT}")
    P(f"v_and_b32 {t0}, 8, {l}\nv_cmp_eq_u32 vcc, 0, {t0}")
    P(f"v_cndmask_b32 {v(F[4])}, {v(F[5])}, {v(F[4])}, vcc")
    P(f"s_lshl_b32 s{sT}, s{sC}, 10\ns_add_u32 s{sT}, s{sT}, 512")
    P(f"v_and_b32 {t0}, 7, {l}\nv_lshl_add_u32 {v(F[4])}, {t0}, 12, {v(F[4])}\nv_add_u32 {v(F[4])}, s{sT}, {v(F[4])}")
    P(f"s_mov_b64 exec, 0xffff")
    I_ = Ins(f"buffer_load_dword {v(F[5])}, {v(F[4])}, {srd(sF)}, 0 offen sc1"); I_.wr = []; P.add(I_)
    P(f"s_mov_b64 exec, -1")


def final(P, name, tag, cfg, T, F, R, ST):
    t0 = v(T[0])
    sleep = cfg.get("sleep", 10)
    P(f"s_mov_b32 s{sT+5}, 0")
    P(f"s_mov_b64 exec, 0xffff")
    P(f"L_pl_{tag}_{name}:")
    P(f"buffer_load_dword {t0}, {v(F[4])}, {srd(sF)}, 0 offen sc1")
    P("s_waitcnt vmcnt(0)")
    P(f"v_cmp_eq_u32 vcc, {v(F[5])}, {t0}")
    P(f"s_add_u32 s{sT+5}, s{sT+5}, 1")
    P(f"s_cmp_ge_u32 s{sT+5}, {SPIN_MAX}\ns_cbranch_scc1 L_pld_{tag}_{name}")
    P(f"s_cbranch_vccz L_pld_{tag}_{name}")
    if sleep: P(f"s_sleep {sleep}")
    P(f"s_branch L_pl_{tag}_{name}")
    P(f"L_pld_{tag}_{name}:")
    P(f"s_mov_b64 exec, -1")
    ST()
    P(f"s_mov_b32 s{sOff}, 0")
    for g in range(8):
        for r in range(2):
            P(f"buffer_load_dwordx4 {v(R+40*r+8+4*g,4)}, {v(F[r])}, {srd(sP)}, s{sOff} offen sc1")
        if g < 7: P(f"s_add_u32 s{sOff}, s{sOff}, {PSTRIDE}")
    P(f"s_mov_b32 s{sT}, 0x3f80\ns_mov_b32 s{sT+1}, 0x3f800000")
    for r in range(2):
        B = R + 40 * r
        if r == 1: P(f"s_cmp_lt_u32 s{sWv}, 2\ns_cbranch_scc1 L_fd_{tag}_{name}")
        for g in range(8):
            for i in range(4):
                src = v(B+8+4*g+i)
                for h in range(2):
                    P(f"v_dot2_f32_bf16 {v(B+2*i+h)}, {src}, s{sT+h}, {v(B+2*i+h) if g else 0}")
        P("s_nop 2")
        for i in range(4):
            P(f"v_cvt_pk_bf16_f32 {v(B+i)}, {v(B+2*i)}, {v(B+2*i+1)}")
        P(f"buffer_store_dwordx4 {v(B,4)}, {v(F[2+r])}, {srd(sOut)}, 0 offen")
    P(f"L_fd_{tag}_{name}:")


def gen_C(name, stamps, cfg):
    LEAD = cfg.get("lead", 10)
    P = Prog()
    V = Alloc("v", 1, 256)
    A = Alloc("a", 0, 256)
    O = V.get(96, 4)
    S = [V.get(24, 4), V.get(24, 4)]
    PB = [V.get(12, 4), V.get(12, 4)]
    NEGM = V.get(12, 4)
    L = V.get(12, 4)
    TM = V.get(2, 2)
    T = [V.get() for _ in range(8)]
    vKr = [V.get() for _ in range(4)]
    vVr = [V.get() for _ in range(8)]
    vLane = V.get()
    vSn = V.get(); vPol = V.get(); vPa = V.get(); vNew = V.get()
    FF = [V.get() for _ in range(6)]
    vStq = [V.get() for _ in range(3)]; vSp = V.get(); vRb = [V.get(), V.get()]; vR = [V.get(), V.get()]
    pool = list(range(S[1], S[1] + 24))
    vXr = [pool.pop(0) for _ in range(2)]
    vWr = [pool.pop(0) for _ in range(8)]
    NFR = 16
    FR = [A.get(4) for _ in range(NFR)]
    XB = [A.get(4) for _ in range(12)]
    QF = A.get(48, 4)
    ONES = A.get(4)
    Ot = lambda dt, qt: O + 4 * (3 * dt + qt)
    St = lambda b, kt, qt: S[b] + 4 * (3 * kt + qt)
    Qf = lambda qt, kk: QF + 4 * (4 * qt + kk)
    if cfg.get("hst"): stamps = False
    ST = Stamps(P, stamps); ST.n = 1
    l = v(vLane)
    P(f"L_C_{name}:")
    if cfg.get("cpf", 1):
        P(f"s_getpc_b64 s[{sT+1}:{sT+2}]")
        P(f"L_pc_{name}:")
        P(f"s_lshr_b32 s{sT}, s2, 3\ns_mul_i32 s{sT}, s{sT}, 3\ns_add_u32 s{sT}, s{sT}, s{sWv}\ns_mul_i32 s{sT}, s{sT}, 640")
        P(f"v_and_b32 {v(T[0])}, 63, v0\nv_mul_u32_u24 {v(T[0])}, 12, {v(T[0])}\nv_add_u32 {v(T[0])}, s{sT}, {v(T[0])}")
        P(f"v_min_u32 {v(T[0])}, L_cend_{name}-{name}-8, {v(T[0])}")
        P(f"s_sub_u32 s{sT+1}, s{sT+1}, L_pc_{name}-{name}\ns_subb_u32 s{sT+2}, s{sT+2}, 0")
        P(f"v_mov_b32 {v(TM+1)}, s{sT+2}")
        P(f"v_add_co_u32 {v(TM)}, vcc, s{sT+1}, {v(T[0])}")
        P(f"v_addc_co_u32 {v(TM+1)}, vcc, 0, {v(TM+1)}, vcc")
        I_ = Ins(f"global_load_dword {v(vPol)}, {v(TM,2)}, off"); I_.wr = []; P.add(I_)
    late_srds(P, stamps, False)
    P(f"v_and_b32 {l}, 63, v0")
    l15, l4, rr, cc, g1 = (v(T[i]) for i in range(1, 6))
    t0, t6, t7 = v(T[0]), v(T[6]), v(T[7])
    P(f"s_add_u32 s{sT}, s{sC}, 1\nv_add_u32 {t0}, s{sT}, {l}\nv_and_b32 {t0}, 3, {t0}\nv_lshlrev_b32 {t0}, 10, {t0}")
    P(f"s_lshl_b32 s{sT}, s{sWv}, 7\nv_and_b32 {t6}, 4, {l}\nv_lshl_add_u32 {t0}, {t6}, 7, {t0}\nv_add_u32 {v(vPa)}, s{sT}, {t0}")
    P(f"s_mov_b64 exec, 0x8f")
    I_ = Ins(f"buffer_load_dword {v(vSn)}, {v(vPa)}, {srd(sF)}, s{sGr} offen sc1"); I_.wr = []; P.add(I_)
    P(f"s_mov_b64 exec, -1")
    P(f"v_and_b32 {l15}, 15, {l}\nv_lshrrev_b32 {l4}, 4, {l}\nv_bfe_u32 {rr}, {l}, 2, 2\nv_and_b32 {cc}, 3, {l}")
    P(f"v_bfe_u32 {g1}, {l}, 4, 1\nv_lshlrev_b32 {g1}, 1, {g1}")
    P(f"s_mul_i32 s{sT}, s{sWv}, 6144\ns_add_u32 s{sT}, s{sT}, {CB+2*CH}")
    P(f"v_lshrrev_b32 {t6}, 1, {l15}\nv_lshlrev_b32 {t7}, 7, {l15}\nv_add_u32 {t7}, s{sT}, {t7}")
    for k in range(2):
        P(f"v_add_u32 {t0}, {4*k}, {l4}\nv_xor_b32 {t0}, {t0}, {t6}")
        P(f"v_lshl_add_u32 {v(vXr[k])}, {t0}, 4, {t7}")
    P(f"v_lshrrev_b32 {t0}, 1, {cc}\nv_lshlrev_b32 {t7}, 2, {rr}\nv_xor_b32 {t0}, {t0}, {t7}\nv_xor_b32 {t0}, {t0}, {g1}")
    P(f"v_lshl_add_u32 {t7}, {l4}, 3, {rr}\nv_lshlrev_b32 {t7}, 8, {t7}\nv_and_b32 {t6}, 1, {cc}\nv_lshl_add_u32 {t7}, {t6}, 3, {t7}\nv_add_u32 {t7}, {XS+CB+2*CH}, {t7}")
    for d in range(8):
        P(f"v_xor_b32 {t6}, {2*d}, {t0}\nv_lshl_add_u32 {v(vWr[d])}, {t6}, 4, {t7}")
    P(f"v_lshl_add_u32 {t7}, {l4}, 2, {rr}\nv_lshlrev_b32 {t7}, 8, {t7}\nv_and_b32 {t6}, 1, {cc}\nv_lshl_add_u32 {t7}, {t6}, 3, {t7}\nv_add_u32 {t7}, {VB}, {t7}")
    for d in range(8):
        P(f"v_xor_b32 {t6}, {2*d}, {t0}\nv_lshl_add_u32 {v(vVr[d])}, {t6}, 4, {t7}")
    P(f"v_lshrrev_b32 {t6}, 5, {l}\nv_add_u32 {t6}, {t6}, {g1}")
    for kk in range(4):
        P(f"v_add_u32 {t0}, {4*kk}, {t6}\nv_xor_b32 {t0}, {t0}, {l15}\nv_lshlrev_b32 {t0}, 4, {t0}\nv_lshl_add_u32 {v(vKr[kk])}, {l15}, 8, {t0}")
    P(f"v_cmp_eq_u32 vcc, 0, {cc}\nv_mov_b32 {t0}, 0x3f803f80")
    P(f"v_cndmask_b32 {t0}, 0, {t0}, vcc")
    for i in range(4): P(f"v_accvgpr_write_b32 {a(ONES+i)}, {t0}")
    P(f"s_mov_b32 s54, {f2u(QSCALE):#x}\ns_mov_b32 s55, {f2u(QSCALE):#x}")
    final_pre(P, l, T, FF)
    sVal, sDone, sPo, sPen, sLd, sPb, sMode, sGr2, sOwn, sRdy, sSt = 20, 21, 22, 25, 26, 28, 29, 32, 34, 35, 51
    sDis = 92
    P(f"s_mul_i32 s{sT}, s{sWv}, 12288\ns_mul_i32 s{sT+1}, s{sWv}, 15360")
    P(f"v_lshlrev_b32 {t7}, 4, {l}\nv_add_u32 {v(vStq[0])}, s{sT}, {t7}\nv_add_u32 {v(vStq[1])}, 4096, {v(vStq[0])}\nv_add_u32 {v(vStq[2])}, 8192, {v(vStq[0])}")
    P(f"v_add_u32 {v(vSp)}, s{sT+1}, {t7}")
    P(f"v_lshrrev_b32 {t0}, 2, {l}\nv_mul_u32_u24 {t0}, 320, {t0}\nv_and_b32 {t6}, 3, {l}\nv_lshl_add_u32 {t0}, {t6}, 3, {t0}")
    P(f"v_bfe_u32 {t6}, {l}, 4, 1\nv_lshl_add_u32 {v(vRb[0])}, {t6}, 5, {t0}\nv_xor_b32 {t6}, 1, {t6}\nv_lshl_add_u32 {v(vRb[1])}, {t6}, 5, {t0}")
    P(f"v_mov_b32 {v(vR[0])}, {v(vRb[0])}\nv_mov_b32 {v(vR[1])}, {v(vRb[1])}")
    for p in range(3):
        P(f"s_add_u32 s{sPo+p}, s{sC}, {p+1}\ns_and_b32 s{sPo+p}, s{sPo+p}, 3\ns_mul_i32 s{sPo+p}, s{sPo+p}, {O_STRIDE}")
    P(f"s_mul_i32 s{sOwn}, s{sC}, {O_STRIDE}\ns_lshr_b32 s{sPb}, s{sH}, 2\ns_mul_i32 s{sPb}, s{sPb}, {PSTRIDE}")
    P(f"s_mov_b32 s{sDone}, 0\ns_mov_b32 s{sVal}, 0\ns_mov_b32 s{sRdy}, 0\ns_mov_b32 s{sMode}, 0\ns_mov_b32 s{sSt}, 0\ns_mov_b32 s{sDis}, 0")
    sDl, sCnt = 30, 31
    P(f"s_mov_b32 s{sDl}, {-2*CH & 0xffffffff:#x}\ns_mov_b32 s{sCnt}, 0")
    for i in range(48): P(f"v_mov_b64 {v(O+2*i,2)}, 0")
    mark = lambda m: Fn(lambda: P.comment("@@" + m))

    mf = []
    RD, EX, CV, MX = [], [], [], []
    fixed = []
    frc = [0]
    def nfr():
        r = FR[frc[0] % NFR]; frc[0] += 1
        return r
    def bar(extra=None, drain=True):
        def f():
            if drain: P.wait_all(vm=False)
            P("s_barrier")
            if extra: extra()
        return Fn(f, True)
    LMIN, LMAX = cfg.get("lmin", 18), cfg.get("lmax", 27)
    assert LMAX <= 3 * (NFR - 1) - 1
    def rd(j, minr, tx, lmin=None):
        RD.append(Item(Ins(tx), 1, max(j - LMAX, minr), max(j - (lmin or LMIN), minr)))

    fixed.append((-1, bar(ST), 0))
    fixed.append((-1, mark("Q0"), 0))
    minr = -1
    loops = {}
    for ci in range(10):
        off = (ci % 2) * CH
        if ci == 2: loops["Q"] = (0, len(RD), 0, len(mf))
        xb = lambda k32, qt: XB[(6 * ci + 3 * k32 + qt) % 12]
        if ci < 9: order = [(k32, dt) for k32 in range(2) for dt in range(8)]
        else: order = [(k32, 2*j + t) for j in range(4) for k32 in range(2) for t in range(2)]
        seen = set()
        for (k32, dt) in order:
            j = len(mf)
            if k32 not in seen:
                seen.add(k32)
                for qt in range(3):
                    rd(j, minr, f"ds_read_b128 {a(xb(k32,qt),4)}, {v(vXr[k32])} offset:{off + 2048*qt}")
            fr = nfr()
            for r_ in range(2):
                rd(j, minr, f"ds_read_b64_tr_b16 {a(fr+2*r_,2)}, {v(vWr[dt])} offset:{off + (32*k32+4*r_)*256}")
            for qt in range(3):
                c = v(Ot(dt, qt), 4)
                mf.append(([a(fr, 4)] + [a(xb(k32, q_), 4) for q_ in range(3)] if qt == 0 else [], Ins(f"{MF} {v(Ot(dt,qt),4)}, {a(fr,4)}, {a(xb(k32,qt),4)}, {c}")))
            if ci == 9 and k32 == 1 and dt % 2 == 1:
                jj = dt // 2
                its = []
                for qt in range(3):
                    ta, tb = Ot(dt - 1, qt), Ot(dt, qt)
                    for b_ in (ta, ta + 2, tb, tb + 2):
                        its.append(f"v_pk_mul_f32 {v(b_,2)}, {v(b_,2)}, s[54:55]")
                    its += [f"v_cvt_pk_bf16_f32 {v(ta)}, {v(ta)}, {v(ta+1)}", f"v_cvt_pk_bf16_f32 {v(ta+1)}, {v(ta+2)}, {v(ta+3)}",
                            f"v_cvt_pk_bf16_f32 {v(tb)}, {v(tb)}, {v(tb+1)}", f"v_cvt_pk_bf16_f32 {v(tb+1)}, {v(tb+2)}, {v(tb+3)}"]
                for qt in range(3):
                    ta, tb = Ot(dt - 1, qt), Ot(dt, qt)
                    its += [f"v_permlane16_swap_b32 {v(ta)}, {v(tb)}", f"v_permlane16_swap_b32 {v(ta+1)}, {v(tb+1)}"]
                for qt in range(3):
                    ta, tb = Ot(dt - 1, qt), Ot(dt, qt)
                    for i, r_ in enumerate((ta, ta + 1, tb, tb + 1)):
                        its.append(f"v_accvgpr_write_b32 {a(Qf(qt,jj)+i)}, {v(r_)}")
                e = len(mf) - 1
                dl = 480 + 6 * jj - 2
                for k_, tx in enumerate(its):
                    CV.append(Item(Ins(tx), 1, e + 3, max(e + 3, dl)))
        gb = len(mf) - 1 - (LMIN - cfg.get("qbo", 5))
        fixed.append((gb, bar(), 2))
        minr = gb
        if ci % 2 == 1 and ci < 9:
            for r_ in vXr + vWr:
                RD.append(Item(Ins(f"v_add_u32 {v(r_)}, s{sDl}, {v(r_)}"), 1, -1, gb - 1))
            RD.append(Item(Ins(f"s_sub_u32 s{sDl}, 0, s{sDl}"), 1, -1, gb - 1))
            e = len(mf) - 1
            fixed.append((e - 1, Ins(f"s_add_u32 s{sCnt}, s{sCnt}, 1"), 1))
            fixed.append((e, Ins(f"s_cmp_lt_u32 s{sCnt}, 4"), 1))
            fixed.append((e, Ins(f"s_cbranch_scc1 L_qloop_{name}"), 1))
            fixed.append((e, mark(f"Q{(ci+1)//2}"), 0))
    g_q = len(mf) - 1
    for i in range(48): CV.append(Item(Ins(f"v_mov_b64 {v(O+2*i,2)}, 0"), 1, g_q, g_q + 46))
    for i in range(6): CV.append(Item(Ins(f"v_mov_b64 {v(L+2*i,2)}, 0"), 1, g_q, g_q + 46))
    def qdone():
        P(f"s_mov_b32 s{sCnt}, 0")
        ST()
    fixed.append((g_q, Fn(qdone), 2))

    def rowmax(dst, b, qt):
        s0, s1 = St(b, 0, qt), St(b, 1, qt)
        P(f"v_max3_f32 {dst}, {v(s0)}, {v(s0+1)}, {v(s0+2)}\nv_max3_f32 {dst}, {dst}, {v(s0+3)}, {v(s1)}")
        P(f"v_max3_f32 {dst}, {dst}, {v(s1+1)}, {v(s1+2)}\nv_max_f32 {dst}, {dst}, {v(s1+3)}")
        P(f"v_mov_b32 {t0}, {dst}\nv_permlane16_swap_b32 {dst}, {t0}\nv_max_f32 {dst}, {dst}, {t0}")
        P(f"v_mov_b32 {t0}, {dst}\nv_permlane32_swap_b32 {dst}, {t0}\nv_max_f32 {dst}, {dst}, {t0}\nv_ceil_f32 {dst}, {dst}")

    def init_main():
        for qt in range(3):
            d = v(T[1 + qt])
            rowmax(d, 0, qt)
            for i in range(4): P(f"v_sub_f32 {v(NEGM+4*qt+i)}, 0, {d}")
        for qt in range(3):
            d = v(T[1 + qt])
            for kt in range(2):
                for i in range(4): P(f"v_sub_f32 {v(St(0,kt,qt)+i)}, {v(St(0,kt,qt)+i)}, {d}")

    bar_gap = {-1: minr}
    stubs = {}
    def iteration(u, has_qk, has_pv, has_sm, do_bar, sumfirst=False):
        odd = (u % 2 != 0)
        s_ = (u + 1) // 2
        g0 = len(mf)
        minr = bar_gap.get(s_ - 1, -1)
        if has_qk:
            un = u + 1; b = un & 1
            for kk in range(4):
                for kt in range(2):
                    fr = nfr(); j = len(mf)
                    rd(j, minr, f"ds_read_b128 {a(fr,4)}, {v(vKr[kk])} offset:{slots[('K',s_ % 4)] + b*8192 + kt*4096}")
                    for qt in range(3):
                        c = v(St(b, kt, qt), 4) if kk else ("0" if un == 0 else v(NEGM + 4*qt, 4))
                        mf.append(([a(fr, 4)] if qt == 0 else [], Ins(f"{MF} {v(St(b,kt,qt),4)}, {a(fr,4)}, {a(Qf(qt,kk),4)}, {c}")))
        pv0 = len(mf)
        if has_pv:
            un = u - 1; b = un & 1; tv = un // 2
            so = slots[("V", tv % 4)] - VB
            for qt in range(3 if sumfirst else 0):
                mf.append(([], Ins(f"{MF} {v(L+4*qt,4)}, {a(ONES,4)}, {v(PB[b]+4*qt,4)}, {v(L+4*qt,4)}")))
            for dt in range(8):
                fr = nfr(); j = len(mf)
                for r_ in range(2):
                    rd(j, minr, f"ds_read_b64_tr_b16 {a(fr+2*r_,2)}, {v(vVr[dt])} offset:{so + (32*b+16*r_)*256}")
                for qt in range(3):
                    mf.append(([a(fr, 4)] if qt == 0 else [], Ins(f"{MF} {v(Ot(dt,qt),4)}, {a(fr,4)}, {v(PB[b]+4*qt,4)}, {v(Ot(dt,qt),4)}")))
            for qt in range(0 if sumfirst else 3):
                mf.append(([], Ins(f"{MF} {v(L+4*qt,4)}, {a(ONES,4)}, {v(PB[b]+4*qt,4)}, {v(L+4*qt,4)}")))
        g1_ = len(mf) - 1
        span = g1_ - g0
        if has_sm:
            b = u & 1
            k_ = 0
            for qt in range(3):
                for kt in range(2):
                    s0 = St(b, kt, qt)
                    for h in range(2):
                        es = []
                        for z in range(2):
                            hi = g0 + min(span - 2, 6 + (k_ * (span - 8)) // 24 + cfg.get("exsl", 4)); k_ += 1
                            es.append(Item(Ins(f"v_exp_f32 {v(s0+2*h+z)}, {v(s0+2*h+z)}"), 2, g0, hi))
                        EX.extend(es)
                        CV.append(Item(Ins(f"v_cvt_pk_bf16_f32 {v(PB[b]+4*qt+2*kt+h)}, {v(s0+2*h)}, {v(s0+2*h+1)}"), 1, g0, g1_, es, 1))
        for z in range(cfg.get("diagpad", 0) if (has_qk and has_pv) else 0):
            fixed.append((g0 + 4 + 6 * z, Ins("s_nop 7"), 0))
        if do_bar:
            gb = g1_ - 14 if has_pv else g1_ - 11
            fixed.append((gb, bar(None, False), 1))
            bar_gap[s_] = g1_ - 14 if has_pv else gb
        if has_qk:
            if u == -1:
                fixed.append((g1_, Fn(init_main), 2))
            else:
                sb = S[(u + 1) & 1]
                mc = [f"v_max3_f32 {v(TM)}, {v(sb)}, {v(sb+1)}, {v(sb+2)}"]
                for i in range(3, 23, 2):
                    mc.append(f"v_max3_f32 {v(TM)}, {v(TM)}, {v(sb+i)}, {v(sb+i+1)}")
                mc.append(f"v_max_f32 {v(TM)}, {v(TM)}, {v(sb+23)}")
                mc.append(f"v_cmp_lt_f32 vcc, {f2u(THR):#x}, {v(TM)}")
                lo = min(pv0 + 1, g1_)
                for k_, tx in enumerate(mc):
                    MX.append(Item(Ins(tx), 1, lo, max(lo, g1_ - 1 - (12 - k_) // 2)))
                lab = f"L_ok_{name}_{'p' if u == 0 else (u - 1) % 8}"
                fixed.append((g1_, Ins(f"s_cbranch_vccnz {lab}s"), 1))
                fixed.append((g1_, Ins(f"{lab}:"), 0))
                stubs[lab] = f"L_rare{'A' if odd else 'B'}_{name}"
        return g0, g1_
    def group_waits(mf, WG):
        idx = [i for i, (pre, I) in enumerate(mf) if pre]
        for k in range(0, len(idx), WG):
            pp = []
            for q in idx[k:k + WG]: pp += mf[q][0]
            mf[idx[k]] = (pp, mf[idx[k]][1])
            for q in idx[k + 1:k + WG]: mf[q] = ([], mf[q][1])
    for u in range(-1, 26):
        if u == 1: la = (len(RD), len(mf))
        if u == 9: loops["A"] = (la[0], len(RD), la[1], len(mf))
        g0, g1_ = iteration(u, True, u >= 1, u >= 0, u % 2 == 0)
        if u >= 0 and u % 8 == 0:
            if u > 0:
                fixed.append((g1_, Ins(f"s_branch L_aloop_{name}"), 1))
            fixed.append((g1_, mark(f"A{u//8}"), 0))
        if u > 0 and u % 8 == 6:
            fixed.append((g1_ - 2, Ins(f"s_add_u32 s{sCnt}, s{sCnt}, 1"), 1))
            fixed.append((g1_ - 1, Ins(f"s_cmp_eq_u32 s{sCnt}, 4"), 1))
            fixed.append((g1_, Ins(f"s_cbranch_scc1 L_tail_{name}"), 1))
            fixed.append((g1_, mark(f"X{u//8}"), 0))
    group_waits(mf, 4)
    pack(mf, [RD, EX, CV, MX], fixed)
    for (r0, r1, g_0, g_1) in (loops["Q"], loops["A"]):
        n = r1 - r0
        for i in range(n):
            rel = RD[r1 + i].gap - g_1
            x = RD[r0 + i]
            if rel >= 0: x.lo = max(x.lo, g_0)
            else: x.hi = min(x.hi, g_0 - 1); x.lo = min(x.lo, x.hi)
    for st_ in (RD, EX, CV, MX):
        for x in st_: x.gap = None
    merge(P, mf, pack(mf, [RD, EX, CV, MX], fixed))
    cut = next(i for i, it in enumerate(P.items) if isinstance(it, tuple) and it[0] == "comment" and it[1] == "@@X2")
    del P.items[cut + 1:]
    P(f"L_tail_{name}:")
    mf.clear(); RD.clear(); EX.clear(); CV.clear(); MX.clear(); fixed.clear(); bar_gap.clear()
    frc[0] = 8
    ACC = O + 48
    assert ACC + 120 <= NEGM
    At = lambda t, qt: ACC + 4 * (3 * t + qt)
    Ow = lambda qt, j: O + 4 * (3 * j + qt)
    PF0 = 64
    assert FR[-1] + 4 <= PF0
    pf = lambda p, qt, j: a(PF0 + 48*p + 4*(4*qt + j), 4)
    pol = lambda: P(f"s_mov_b64 exec, 7\nbuffer_load_dword {v(vPol)}, {v(vPa)}, {srd(sF)}, s{sGr} offen sc1\ns_mov_b64 exec, -1")
    ga, _ = iteration(31, False, True, True, False)
    g0, g1_ = iteration(32, False, True, False, False, True)
    fixed.append((ga + 6, Fn(pol), 2))
    fixed.append((g1_ - 5, bar(None, False), 1))
    BIG = 10 ** 6
    ZR = []
    for r_ in list(range(S[0], S[0] + 24, 2)) + list(range(S[1], S[1] + 24, 2)) + list(range(PB[0], PB[0] + 12, 2)):
        ZR.append(Item(Ins(f"v_mov_b64 {v(r_,2)}, 0"), 1, g0, BIG))
    for qt in range(3):
        CV.append(Item(Ins(f"v_rcp_f32 {v(L+4*qt)}, {v(L+4*qt)}"), 2, g0 + 5, g0 + 8))
    for j in range(4):
        lo = min(g0 + 3 + 6 * j + 5 + 3, g1_)
        for qt in range(3):
            for t_ in (Ot(2*j, qt), Ot(2*j + 1, qt)):
                for h in range(2):
                    CV.append(Item(Ins(f"v_pk_mul_f32 {v(t_+2*h,2)}, {v(t_+2*h,2)}, {v(L+4*qt,2)} op_sel_hi:[1,0]"), 1, lo, BIG - 1))
        for qt in range(3):
            ta, tb = Ot(2*j, qt), Ot(2*j + 1, qt)
            d = Ow(qt, j)
            for tx in (f"v_cvt_pk_bf16_f32 {v(d)}, {v(ta)}, {v(ta+1)}", f"v_cvt_pk_bf16_f32 {v(d+1)}, {v(ta+2)}, {v(ta+3)}",
                       f"v_cvt_pk_bf16_f32 {v(d+2)}, {v(tb)}, {v(tb+1)}", f"v_cvt_pk_bf16_f32 {v(d+3)}, {v(tb+2)}, {v(tb+3)}",
                       f"buffer_store_dwordx4 {v(d,4)}, {v(vStq[qt])}, {srd(sOg)}, s{sOwn} offen offset:{1024*j} sc1"):
                CV.append(Item(Ins(tx), 1, lo, BIG - 1))
    group_waits(mf, 2)
    merge(P, mf, pack(mf, [RD, EX, CV, MX, ZR], fixed))
    ST()

    STo = ST
    if cfg.get("ast") or cfg.get("cyc") or cfg.get("qst"): ST = lambda: None
    sleep = cfg.get("sleep", 4)
    svc = lambda: P(f"s_call_b64 s[{sGr2}:{sGr2+1}], L_svc_{name}")
    P("s_waitcnt vmcnt(12)")
    P(f"v_cmp_ne_u32 vcc, {v(vSn)}, {v(vPol)}")
    P(f"v_add_u32 {v(vNew)}, 1, {v(vSn)}")
    P(f"s_and_b32 s{sPen}, vcc_lo, 7")
    svc()
    ST()
    P.items.append(("PREREAD",))
    for r_ in list(range(O + 48, O + 96, 2)) + list(range(PB[1], PB[1] + 12, 2)):
        P(f"v_mov_b64 {v(r_,2)}, 0")
    P(f"s_mov_b32 s{sT+5}, 0")
    nm = [(j, 2*k + t) for k in range(5) for j in range(4) for t in range(2)]
    def outp(k):
        its = []
        for qt in range(3):
            ta, tb = At(2*k, qt), At(2*k + 1, qt)
            its += [f"v_cvt_pk_bf16_f32 {v(ta)}, {v(ta)}, {v(ta+1)}", f"v_cvt_pk_bf16_f32 {v(ta+1)}, {v(ta+2)}, {v(ta+3)}",
                    f"v_cvt_pk_bf16_f32 {v(ta+2)}, {v(tb)}, {v(tb+1)}", f"v_cvt_pk_bf16_f32 {v(ta+3)}, {v(tb+2)}, {v(tb+3)}"]
        for qt in range(3):
            ta = At(2*k, qt)
            its += [f"v_permlane16_swap_b32 {v(ta)}, {v(ta+2)}", f"v_permlane16_swap_b32 {v(ta+1)}, {v(ta+3)}",
                    f"s_add_u32 s{sOff}, s{sPb}, {(5*qt + k)*1024}",
                    f"buffer_store_dwordx4 {v(ta,4)}, {v(vSp)}, {srd(sP)}, s{sOff} offen sc1"]
        return its
    NPRE = 12
    def gemm_items():
        mf = []; RDb = []
        frc[0] = 0
        for (j, t) in nm:
            fr = nfr(); jx = len(mf)
            for r_ in range(2):
                RDb.append(Item(Ins(f"ds_read_b64_tr_b16 {a(fr+2*r_,2)}, {v(vR[t&1])} offset:{(32*j+16*r_)*320 + 64*(t//2)}"), 1, max(jx - 21, 0), max(jx - 15, 0)))
            for qt in range(3):
                mf.append(([a(fr, 4)] if qt == 0 else [], Ins(f"{MF} {v(At(t,qt),4)}, {a(fr,4)}, {v(Ow(qt,j),4)}, {v(At(t,qt),4)}")))
        group_waits(mf, 2)
        return mf, RDb
    def preread():
        for x in gemm_items()[1][:NPRE]: P.add(x.it)
    hooks = []
    def hook(g):
        def f():
            P(f"s_cbranch_scc0 L_hs{g}_{name}\nL_hr{g}_{name}:")
        hooks.append(g)
        return Fn(f)
    P(f"L_gemm_{name}:")
    mf, RDb = gemm_items()
    fx = []
    for g in cfg.get("hooks", [3, 18, 36, 54, 72, 90, 108]):
        fx.append((g - 1, Ins(f"s_getreg_b32 s{sT}, hwreg(HW_REG_IB_STS)"), 1))
        fx.append((g - 1, Ins(f"s_and_b32 s{sT}, s{sT}, 0xc0000f"), 1))
        fx.append((g, Ins(f"s_or_b32 s{sT}, s{sT}, s{sDis}"), 1))
        fx.append((g, hook(g), 1))
    merge(P, mf, pack(mf, [RDb[NPRE:]], fx))
    P(f"s_cmp_eq_u32 s{sMode}, 0\ns_cbranch_scc0 L_disp_{name}")
    P(f"s_mov_b32 s{sMode}, 1")
    if cfg.get("bst"): ST()
    P("s_barrier")
    ST()
    P(f"L_disp_{name}:")
    P(f"s_andn2_b32 s{sT}, s{sRdy}, s{sDone}")
    P(f"s_cbranch_scc0 L_wait_{name}")
    P(f"s_ff1_i32_b32 s{sT}, s{sT}")
    P(f"s_mul_i32 s{sT+1}, s{sT}, 40960\ns_add_u32 s{sT+1}, s{sT+1}, 40960")
    assert WOQ == [0, 40960, 81920, 122880]
    P(f"v_add_u32 {v(vR[0])}, s{sT+1}, {v(vRb[0])}\nv_add_u32 {v(vR[1])}, s{sT+1}, {v(vRb[1])}")
    P(f"s_bitset1_b32 s{sDone}, s{sT}")
    preread()
    P(f"s_cmp_eq_u32 s{sT}, 1\ns_cbranch_scc1 L_c1_{name}")
    P(f"s_cmp_eq_u32 s{sT}, 2\ns_cbranch_scc1 L_c2_{name}")
    for p in range(3):
        P(f"L_c{p}_{name}:")
        for j in range(4):
            for qt in range(3):
                for i in range(4):
                    P(f"v_accvgpr_read_b32 {v(Ow(qt,j)+i)}, {a(PF0 + 48*p + 4*(4*qt+j) + i)}")
        P(f"s_cmp_eq_u32 s{sDone}, 7\ns_cbranch_scc0 L_gemm_{name}")
        if p < 2: P(f"s_branch L_last_{name}")
    P(f"L_last_{name}:")
    mf, RDb = gemm_items()
    OUT = []
    for k in range(5):
        for tx in outp(k): OUT.append(Item(Ins(tx), 1, min(24*k + 23 + 3, 119), 10 ** 6))
    merge(P, mf, pack(mf, [RDb[NPRE:], OUT], []))
    ST()
    P("s_waitcnt vmcnt(0)")
    setflag(P, v(vNew), v(vPa), 7)
    final(P, name, "C", cfg, T, FF, O, ST)
    if stamps:
        P(f"s_cmp_lg_u32 s{sWv}, 0\ns_cbranch_scc1 L_end_{name}")
        STo.out(P, t0, t7, f"L_end_{name}")
    P(f"L_end_{name}:\ns_endpgm")
    P(f"L_wait_{name}:")
    P("s_waitcnt vmcnt(0)")
    P(f"s_call_b64 s[{sGr2}:{sGr2+1}], L_tick_{name}")
    P(f"s_add_u32 s{sT+5}, s{sT+5}, 1\ns_cmp_lt_u32 s{sT+5}, {SPIN_MAX}\ns_cbranch_scc1 L_disp_{name}")
    P(f"s_mov_b32 s{sPen}, 7")
    P(f"s_branch L_disp_{name}")
    ret2 = f"s_setpc_b64 s[{sGr2}:{sGr2+1}]"
    for g in hooks:
        P(f"L_hs{g}_{name}:")
        P(f"s_call_b64 s[{sGr2}:{sGr2+1}], L_tick_{name}\ns_branch L_hr{g}_{name}")
    P(f"L_tick_{name}:")
    P(f"s_mov_b32 s{sRdy}, s{sVal}")
    P(f"s_cmp_eq_u32 s{sRdy}, 7\ns_cselect_b32 s{sDis}, 1, 0")
    P(f"s_bitcmp1_b32 s{sSt}, 0\ns_cbranch_scc1 L_t1_{name}")
    setflag(P, v(vNew), v(vPa), 3)
    P(f"L_t1_{name}:")
    P(f"v_cmp_ne_u32 vcc, {v(vSn)}, {v(vPol)}")
    P(f"s_mov_b32 s{sSt}, 1")
    P(f"s_or_b32 s{sPen}, s{sPen}, vcc_lo")
    P(f"L_svc_{name}:")
    P(f"s_and_b32 s{sPen}, s{sPen}, 7\ns_andn2_b32 s{sPen}, s{sPen}, s{sVal}")
    P(f"s_cbranch_scc0 L_tp_{name}")
    P(f"s_or_b32 s{sVal}, s{sVal}, s{sPen}")
    for p in range(3):
        P(f"s_bitcmp1_b32 s{sPen}, {p}\ns_cbranch_scc0 L_sv{p}_{name}")
        for j in range(4):
            for qt in range(3):
                P(f"buffer_load_dwordx4 {pf(p,qt,j)}, {v(vStq[qt])}, {srd(sOg)}, s{sPo+p} offen offset:{1024*j} sc1")
        P(f"L_sv{p}_{name}:")
    P(f"L_tp_{name}:")
    P(f"s_cmp_eq_u32 s{sVal}, 7\ns_cbranch_scc1 L_tr_{name}")
    pol()
    P(f"L_tr_{name}:")
    P(ret2)
    P("s_waitcnt vmcnt(0)")

    def rare(lab, b):
        pb = PB[b ^ 1]
        P(f"{lab}:")
        P.fence()
        d, f = v(T[1]), v(T[2])
        for qt in range(3):
            rowmax(d, b, qt)
            P(f"v_max_f32 {d}, 0, {d}\nv_exp_f32 {f}, -{d}")
            for kt in range(2):
                for i in range(4): P(f"v_sub_f32 {v(St(b,kt,qt)+i)}, {v(St(b,kt,qt)+i)}, {d}")
            for i in range(4): P(f"v_sub_f32 {v(NEGM+4*qt+i)}, {v(NEGM+4*qt+i)}, {d}")
            P(f"v_mul_f32 {v(L+4*qt)}, {v(L+4*qt)}, {f}")
            for dt in range(8):
                for i in range(4): P(f"v_mul_f32 {v(Ot(dt,qt)+i)}, {v(Ot(dt,qt)+i)}, {f}")
            for i in range(4):
                r_ = v(pb + 4*qt + i)
                P(f"v_lshlrev_b32 {v(T[3])}, 16, {r_}\nv_and_b32 {v(T[4])}, 0xffff0000, {r_}")
                P(f"v_mul_f32 {v(T[3])}, {v(T[3])}, {f}\nv_mul_f32 {v(T[4])}, {v(T[4])}, {f}")
                P(f"v_cvt_pk_bf16_f32 {r_}, {v(T[3])}, {v(T[4])}")
        P("s_nop 3")
        P(f"s_setpc_b64 s[{sRet}:{sRet+1}]")
    for lab, tgt in stubs.items():
        P(f"{lab}s:\ns_call_b64 s[{sRet}:{sRet+1}], {tgt}\ns_branch {lab}")
    P(f"L_cend_{name}:")
    rare(f"L_rareA_{name}", 0)
    rare(f"L_rareB_{name}", 1)
    k_ = P.items.index(("PREREAD",))
    P.items[k_:k_ + 1] = [x.it for x in gemm_items()[1][:NPRE]]
    st = {}
    body = P.render(st)
    def seg(m0, m1):
        i0 = body.index(f"  ; @@{m0}\n") + len(f"  ; @@{m0}\n")
        return body[i0:body.index(f"  ; @@{m1}\n")]
    import re as _re
    strip = lambda t: _re.sub(r"  ; @@\w+\n", "", t)
    open("lin.s", "w").write(body)
    for k in range(1, 4):
        assert seg("Q0", "Q1") == seg(f"Q{k}", f"Q{k+1}"), f"qloop body {k} differs"
    assert strip(seg("A0", "A1")) == strip(seg("A1", "A2")), "aloop body differs"
    assert seg("A0", "X0") == seg("A2", "X2"), "aloop exit prefix differs"
    h = lambda m: body.index(f"  ; @@{m}\n")
    body = (body[:h("Q0")] + f".p2align 6\nL_qloop_{name}:\n" + seg("Q0", "Q1") + seg("Q4", "A0") + f".p2align 6\nL_aloop_{name}:\n" + seg("A0", "A1")
            + body[h("X2"):])
    if cfg.get("align", 1):
        from align import realign
        body = realign(".p2align 3\n" + body)
    print(f"C: vgpr {V.hi} agpr {A.hi} lines {body.count(chr(10))}")
    return body


def gen_H(name, stamps, cfg):
    kvflag = cfg.get("kvflag", " nt")
    P = Prog()
    V = Alloc("v", 1, 256)
    R = V.get(80, 4)
    T = [V.get() for _ in range(8)]
    vLane = V.get()
    vXd = [V.get() for _ in range(4)]
    vWd = [V.get() for _ in range(4)]
    vKd = [V.get() for _ in range(4)]
    vVd = [V.get() for _ in range(2)]
    vD = [V.get() for _ in range(5)]
    DUM = V.get(4)
    vWrt = [V.get() for _ in range(3)]
    FF = [V.get() for _ in range(6)]
    l = v(vLane)
    l15, l4 = v(T[1]), v(T[2])
    t0, t6, t7 = v(T[0]), v(T[6]), v(T[7])
    P(f"v_and_b32 {l}, 63, v0")
    P(f"v_and_b32 {l15}, 15, {l}\nv_lshrrev_b32 {l4}, 4, {l}")
    P(f"v_lshrrev_b32 {t7}, 3, {l}\nv_mul_u32_u24 {t7}, 1280, {t7}")
    P(f"v_xor_b32 {t0}, {l4}, {l}\nv_and_b32 {t0}, 7, {t0}")
    P(f"v_lshl_add_u32 {v(vXd[0])}, {t0}, 4, {t7}")
    P(f"v_xor_b32 {t0}, 4, {t0}\nv_lshl_add_u32 {v(vXd[1])}, {t0}, 4, {t7}\nv_add_u32 {v(vXd[1])}, 9216, {v(vXd[1])}")
    P(f"v_add_u32 {v(vXd[2])}, 18432, {v(vXd[0])}\nv_add_u32 {v(vXd[3])}, 18432, {v(vXd[1])}")
    P(f"v_lshlrev_b32 {t0}, 2, {l4}\nv_xor_b32 {t0}, {t0}, {l15}\nv_lshlrev_b32 {t7}, 13, {l4}")
    P(f"v_lshl_add_u32 {v(vWd[0])}, {t0}, 4, {t7}\nv_add_u32 {v(vWd[1])}, 31744, {v(vWd[0])}")
    P(f"v_xor_b32 {t6}, 2, {t0}\nv_lshl_add_u32 {t6}, {t6}, 4, {t7}\nv_add_u32 {v(vWd[2])}, {2*31744}, {t6}\nv_add_u32 {v(vWd[3])}, {3*31744}, {t6}")

    occ = []
    def free_ev(lo, hi):
        e = -1
        for (s0, s1, ev) in occ:
            if s0 < hi and lo < s1: e = max(e, ev)
        return e
    Qu = []
    def add(lds, n, pre, ins, need):
        Qu.append(dict(lds=lds, pre=pre, ins=ins, need=need, ok=(free_ev(lds, lds + 1024*n) if lds is not None else -1)))
    for ci in range(10):
        base = chbase(ci)
        for g in range(5):
            n = 4 if g < 4 else 2
            add(base + 4096*g, n, (f"s_lshl_b32 s{sOff}, s{sRot+ci}, 7" if g == 0 else f"s_add_u32 s{sOff}, s{sOff}, 40960 ; {ci} {g}"),
                [f"buffer_load_dwordx4 {v(vXd[j])}, {srd(sX)}, s{sOff} offen offset:{1024*j} lds" for j in range(n)], ci)
        for g in range(4):
            add(base + XS + 4096*g, 4, (f"s_lshl_b32 s{sOff}, s{sRot+ci}, 19" if g == 0 else f"s_add_u32 s{sOff}, s{sOff}, 131072 ; {ci} {g}"),
                [f"buffer_load_dwordx4 {v(vWd[j])}, {srd(sW)}, s{sOff} offen offset:{1024*j} lds" for j in range(4)], ci)
        occ.append((base, base + CH, ci + 1))
    nq = len(Qu)
    sKr = 92
    def kvpre(t, g):
        if g: return f"s_add_u32 s{sOff}, s{sOff}, 4096 ; {t} {g}"
        return f"s_add_u32 s{sOff}, s{sKr}, {t*SLOT}\ns_and_b32 s{sOff}, s{sOff}, 0x3ffff"
    order = list(seq)
    early = cfg.get("early", [])
    pfi = 0
    for i, (kind, t) in enumerate(order):
        ad = slots[(kind, t)]
        need = (10 + t) if kind == "K" else (11 + t)
        for g in range(4):
            vo = lambda j: v(vKd[j]) if kind == 'K' else v(vVd[j & 1])
            sr = srd(sK if kind == 'K' else sV)
            if i in early:
                rb = 64 * early.index(i) + 16 * g
                a = (lambda b_, n_: rng("a", b_, n_)) if rb < 256 else (lambda b_, n_: rng("v", b_ - 128, n_))
                assert free_ev(ad, ad + SLOT) < need
                add(None, 4, kvpre(t, g),
                    [f"buffer_load_dwordx4 {a(rb+4*j,4)}, {vo(j)}, {sr}, s{sOff} offen offset:{1024*j}{kvflag}" for j in range(4)], need)
                Qu[-1]["wr"] = [f"ds_write_b128 {v(vWrt[(ad + 4096*g) >> 16])}, {a(rb+4*j,4)} offset:{((ad + 4096*g) & 0xffff) + 1024*j}" for j in range(4)]
            else:
                add(ad + 4096*g, 4, kvpre(t, g),
                    [f"buffer_load_dwordx4 {vo(j)}, {sr}, s{sOff} offen offset:{1024*j}{kvflag} lds" for j in range(4)], need)
            Qu[-1]["tile"] = i
        occ.append((ad, ad + SLOT, (11 + t) if kind == "K" else min(12 + t, E1)))
        for _ in range(cfg.get("pfn", 1)):
          if i >= cfg.get("pf0", 6) and pfi < 20:
            add(None, 1, f"s_add_u32 s{sOff}, s{sRot+4}, {(pfi//5)*16*1280}",
                [f"buffer_load_dwordx4 {v(DUM,4)}, {v(vD[pfi%5])}, {srd(sWo)}, s{sOff} offen{cfg.get('pfflag','')}"], None)
            pfi += 1
    mix = cfg.get("mix", {})
    if mix:
        assert V.hi <= 128
        newq = []
        moved = set()
        for ci in range(-1, 10):
            if ci >= 0: newq += Qu[9*ci:9*ci + 9]
            for tl in mix.get(str(ci), []):
                newq += [g for g in Qu[nq:] if g.get("tile") == tl]; moved.add(tl)
        rest = [g for g in Qu[nq:] if g.get("tile") not in moved]
        nq = len(newq)
        Qu[:] = newq + rest
    nkv = len(Qu)
    wq = []
    for q in range(4):
        for e in range(40):
            wq.append((q, e, free_ev(WOQ[q] + 1024*e, WOQ[q] + 1024*(e+1))))
    wq.sort(key=lambda x: (max(x[2], 24 if x[0] == 0 else cfg.get('wosort', 25)), x[0], x[1]))
    for q, e, _ in wq:
        add(WOQ[q] + 1024*e, 1, f"s_add_u32 s{sOff}, s{sRot+q}, {(e//5)*16*1280}",
            [f"buffer_load_dwordx4 {v(vD[e%5])}, {srd(sWo)}, s{sOff} offen{cfg.get('woflag','')} lds"], E1 if q == 0 else E2)

    issued = [0]; cnt = [0]; waited = [0]
    ends = []
    lastpre = [None]
    def issue_one():
        g = Qu[issued[0]]
        if g["lds"] is not None: P(f"s_mov_b32 m0, {g['lds']}")
        if g["pre"] != lastpre[0]: P(g["pre"]); lastpre[0] = g["pre"]
        for tx in g["ins"]:
            if cfg.get("nokv") and nq + 40 <= issued[0] < nkv: continue
            P(tx, tok=issued[0])
            if g["lds"] is None: P.items[-1].wr = []
        cnt[0] += len(g["ins"]); ends.append(cnt[0]); issued[0] += 1
    def refill(e):
        while issued[0] < len(Qu):
            g = Qu[issued[0]]
            W = cfg.get("Wq", 60) if issued[0] < nq else (cfg.get("W", 48) if (issued[0] < nkv and g["lds"] is not None) else (cfg.get("Wwo", 32) if e < E1 else 60))
            if e == 0: W = cfg.get("W0", 60)
            if g["ok"] >= e: break
            if issued[0] >= nq and e < cfg.get("kvstart", 0): break
            if cnt[0] + len(g["ins"]) - waited[0] > W: break
            issue_one()
    def wait_group(i):
        if ends[i] > waited[0]:
            P.wait_tok(i); waited[0] = ends[i]

    refill(0)
    hst = cfg.get("hst") if stamps else None
    late_srds(P, bool(hst))
    HS = Stamps(P, bool(hst)); HS.n = 1
    lastpre[0] = None
    P(f"s_mul_i32 s{sKr}, s{sBH}, {cfg.get('kvrot', 0)}\ns_and_b32 s{sKr}, s{sKr}, 15\ns_lshl_b32 s{sKr}, s{sKr}, 14")
    P(f"v_lshlrev_b32 {v(vWrt[0])}, 4, {l}\nv_add_u32 {v(vWrt[1])}, 65536, {v(vWrt[0])}\nv_add_u32 {v(vWrt[2])}, 131072, {v(vWrt[0])}")
    P(f"v_lshlrev_b32 {t7}, 8, {l4}")
    for n in range(4):
        P(f"v_add_u32 {t0}, {4*n}, {l4}\nv_xor_b32 {t0}, {t0}, {l15}\nv_lshl_add_u32 {v(vKd[n])}, {t0}, 4, {t7}")
    P(f"v_lshlrev_b32 {t0}, 2, {l4}\nv_xor_b32 {t0}, {t0}, {l15}")
    for n in range(2):
        P(f"v_xor_b32 {t6}, {2*n}, {t0}\nv_lshl_add_u32 {v(vVd[n])}, {t6}, 4, {t7}")
    for i in range(5):
        P(f"v_add_u32 {t0}, {64*i}, {l}")
        P(f"v_mul_u32_u24 {t7}, 3277, {t0}\nv_lshrrev_b32 {t7}, 16, {t7}")
        P(f"v_mul_u32_u24 {t6}, 20, {t7}\nv_sub_u32 {t6}, {t0}, {t6}")
        P(f"v_bfe_u32 {t0}, {t7}, 2, 1\nv_lshlrev_b32 {t0}, 1, {t0}\nv_xor_b32 {t6}, {t6}, {t0}")
        P(f"v_mul_u32_u24 {t7}, 1280, {t7}\nv_lshl_add_u32 {v(vD[i])}, {t6}, 4, {t7}")
    final_pre(P, l, T, FF)
    for e in range(0, E2 + 1):
        P.comment(f"H epoch {e}")
        c_start = cnt[0]
        if e == 11:
            for q in range(4):
                P(f"s_add_u32 s{sRot+q}, s{sC}, {q}\ns_and_b32 s{sRot+q}, s{sRot+q}, 3\ns_mul_i32 s{sRot+q}, s{sRot+q}, {(1024 if HM[0] else 128)*1280}")
            P(f"s_lshr_b32 s{sRot+4}, s{sB}, 1\ns_mul_i32 s{sRot+4}, s{sRot+4}, {(1024 if HM[0] else 128)*1280}\ns_and_b32 s{sRot+5}, s{sB}, 1\ns_mul_i32 s{sRot+5}, s{sRot+5}, {64*1280}\ns_add_u32 s{sRot+4}, s{sRot+4}, s{sRot+5}")
        refill(e)
        needs = [i for i, g in enumerate(Qu) if g["need"] == e]
        for i in needs:
            if "wr" in Qu[i] and i < issued[0] and ends[i] <= waited[0]:
                for tx in Qu[i]["wr"]: P(tx)
                Qu[i]["done"] = 1
        if needs:
            last = max(needs)
            ah = cfg.get("ahead", {}).get(str(e), 0)
            if ah: last = min(last + ah, nq - 1) if last < nq else last
            i = 0
            while i <= last:
                if i >= issued[0]:
                    raise RuntimeError(f"epoch {e}: group {i} not issued")
                if ends[i] > waited[0] and (i == last or ends[i] - waited[0] >= cfg.get('wgran', 8)):
                    wait_group(i)
                    refill(e)
                if Qu[i]["need"] == e and "wr" in Qu[i] and "done" not in Qu[i]:
                    wait_group(i)
                    for tx in Qu[i]["wr"]: P(tx)
                i += 1
            B = cfg.get("budget", 0)
            if B and cfg.get("bud0", 2) <= e <= 10:
                while issued[0] < len(Qu) and Qu[issued[0]]["ok"] < e and cnt[0] - c_start + 8 <= B:
                    j = next((j for j in range(issued[0]) if ends[j] - waited[0] >= 8), None)
                    if j is None or any("tile" in Qu[k] for k in range(issued[0]) if waited[0] < ends[k] <= ends[j]): break
                    n_before = issued[0]
                    wait_group(j); refill(e)
                    if issued[0] == n_before: break
            if any("wr" in Qu[i] for i in needs): P.wait_all(vm=False)
        if hst and -e in hst: HS()
        P("s_barrier")
        if hst and e in hst: HS()
    assert issued[0] == len(Qu)
    final(P, name, "H", cfg, T, FF, R, lambda: None)
    if hst:
        assert HS.n <= 9
        P(f"v_and_b32 v0, 63, v0")
        HS.out(P, t0, t7, f"L_end_{name}")
    P("s_endpgm")
    st = {}
    body = P.render(st)
    print(f"H: vgpr {V.hi} stats {st}")
    return body


def gen_k1(name, stamps=False, cfg=None):
    cfg = dict(cfg or {})
    Stamps.cyc = bool(cfg.get("cyc"))
    P = Prog()
    P(f"s_cmp_ge_u32 s2, 256\ns_cbranch_scc1 L_end_{name}")
    P("s_load_dwordx8 s[4:11], s[0:1], 0")
    P("s_load_dwordx8 s[12:19], s[0:1], 32")
    if stamps:
        P("s_memrealtime s[60:61]")
    P("v_lshrrev_b32 v1, 6, v0")
    P(f"s_and_b32 s{sT}, s2, 7\ns_bfe_u32 s{sC}, s2, 0x20003\ns_lshr_b32 s{sB}, s2, 5")
    P(f"v_readfirstlane_b32 s{sWv}, v1")
    P(f"s_lshl_b32 s{sH}, s{sT}, 2\ns_add_u32 s{sH}, s{sH}, s{sC}")
    P(f"s_lshl_b32 s{sBH}, s{sB}, 5\ns_add_u32 s{sBH}, s{sBH}, s{sH}")
    HM[0] = cfg.get("hm", 1)
    P(f"s_and_b32 s{sHt}, s2, 31" if HM[0] else f"s_mov_b32 s{sHt}, s{sH}")
    P(f"s_cmp_lt_u32 s{sWv}, 3\ns_cbranch_scc1 L_Cw_{name}")
    P(f"s_mul_i32 s{sT}, s{sB}, 5\ns_lshr_b32 s{sT}, s{sT}, 2\ns_mul_i32 s{sT+1}, s{sC}, 5\ns_lshr_b32 s{sT+1}, s{sT+1}, 1\ns_add_u32 s{sT}, s{sT}, s{sT+1}")
    P(f"s_sub_u32 s{sT+1}, s{sT}, 10\ns_cmp_ge_u32 s{sT}, 10\ns_cselect_b32 s{sRot}, s{sT+1}, s{sT}")
    for i in range(1, 10):
        P(f"s_add_u32 s{sRot+i}, s{sRot+i-1}, 1\ns_cmp_eq_u32 s{sRot+i}, 10\ns_cselect_b32 s{sRot+i}, 0, s{sRot+i}")
    P(f"s_mul_i32 s{sT+5}, s{sB}, 184320\ns_lshl_b32 s{sT+6}, s{sHt}, 8")
    P.wait_all(vm=False)
    P(f"s_add_u32 s{sX}, s4, s{sT+5}\ns_addc_u32 s{sX+1}, s5, 0\ns_mov_b32 s{sX+2}, 184320\ns_mov_b32 s{sX+3}, 0x20000")
    P(f"s_add_u32 s{sW}, s10, s{sT+6}\ns_addc_u32 s{sW+1}, s11, 0\ns_sub_u32 s{sW+2}, {640*8192}, s{sT+6}\ns_mov_b32 s{sW+3}, 0x20000")
    hA = gen_H(name, stamps, cfg)
    if "mixB" in cfg:
        P(f"s_add_u32 s{sT}, s{sB}, s{sC}\ns_bitcmp1_b32 s{sT}, 0\ns_cbranch_scc1 L_HB_{name}")
        hB = gen_H(name, stamps, dict(cfg, mix=cfg["mixB"]))
        for e in range(0, E2 + 1):
            m = f"  ; H epoch {e}\n"
            if hA[hA.index(m):] == hB[hB.index(m):]: break
        print("join at epoch", e)
        hA = hA[:hA.index(m)] + f"L_HJ_{name}:\n" + hA[hA.index(m):] + f"L_HB_{name}:\n" + hB[:hB.index(m)] + f"  s_branch L_HJ_{name}\n"
    head = P.render()
    cw = f"L_Cw_{name}:\n  s_waitcnt lgkmcnt(0)\n"
    body = head + hA + cw + gen_C(name, stamps, cfg)
    return kernel_head(name) + body + kernel_desc(name, 512, 100, 256)
```

```python
import struct
from asmlib import *


def f2u(x):
    return struct.unpack("<I", struct.pack("<f", x))[0]


QSCALE = 1.4426950408889634 / (128 ** 0.5)
THR = 8.0
SLOT = 16384
CH = 34816
XS = 18432
VB = 65536
O_STRIDE = 36864
PART = 16 << 20
PSTRIDE = 46080
FLAGS = 48 << 20
WOQ = [0, 40960, 81920, 122880]
SPIN_MAX = 50000
MF = "v_mfma_f32_16x16x32_bf16"

v = lambda b, n=1: rng("v", b, n)
a = lambda b, n=1: rng("a", b, n)
srd = lambda b: f"s[{b}:{b+3}]"
sC = 3
sX, sK, sV, sW = 20, 24, 28, 32
sWo, sOg, sP, sF, sOut, sDbg = 4, 8, 12, 16, 36, 96
sWv, sB, sH, sT, sOff, sRet = 40, 41, 42, 43, 50, 52
sGr, sBH = 95, 94
sRot = 80

seq = [("K", 0)]
for _s in range(1, 16):
    seq += [("K", _s), ("V", _s - 1)]
seq += [("V", 15)]
tidx = {t: i for i, t in enumerate(seq)}
slots = {}
for _t in range(16):
    slots[("K", _t)] = (_t % 4) * SLOT
    slots[("V", _t)] = VB + (_t % 4) * SLOT
CB = 24576
chbase = lambda ci: CB + ((ci + 2) % 4) * CH
E1, E2 = 27, 28


class Stamps:
    cyc = False

    def __init__(self, P, on, base_sgpr=60):
        self.P = P; self.on = on; self.n = 0; self.base = base_sgpr

    def __call__(self):
        if not self.on:
            return
        assert self.n < 16
        r = self.base + 2 * self.n
        self.P(f"s_memrealtime s[{r}:{r+1}]")
        if Stamps.cyc:
            self.P(f"s_memtime s[{r+2}:{r+3}]")
            self.n += 1
        self.P("s_waitcnt lgkmcnt(0)")
        self.n += 1

    def out(self, P, t0, t7, endlab):
        P.wait_all()
        self()
        P(f"s_lshl_b32 s44, s2, 8\ns_add_u32 s44, s44, {0x8000000}")
        P(f"v_and_b32 {t7}, 0xff, v0\nv_lshlrev_b32 {t0}, 2, {t7}\nv_add_u32 {t0}, s44, {t0}")
        P(f"v_cmp_gt_u32 vcc, {2*self.n}, {t7}")
        P(f"v_mov_b32 {t7}, 0")
        for i in range(2 * self.n):
            P(f"v_writelane_b32 {t7}, s{self.base+i}, {i}")
        P(f"s_and_saveexec_b64 s[44:45], vcc")
        P(f"s_cbranch_execz {endlab}")
        P(f"buffer_store_dword {t7}, {t0}, s[56:59], 0 offen")


def merge(P, mf, fill):
    fill = sorted(fill, key=lambda x: (x[0], x[1]))
    k = 0

    def emit_upto(g):
        nonlocal k
        while k < len(fill) and fill[k][0] <= g:
            it = fill[k][2]
            if isinstance(it, Ins): P.add(it)
            else: it()
            k += 1
    emit_upto(-1)
    for i, (pre, I) in enumerate(mf):
        if pre: P.wait_regs(pre)
        P.add(I)
        emit_upto(i)
    emit_upto(10 ** 9)


class Item:
    __slots__ = ("it", "cost", "lo", "hi", "deps", "gap", "dist")
    def __init__(self, it, cost, lo, hi, deps=(), dist=0):
        self.it = it; self.cost = cost; self.lo = lo; self.hi = hi; self.deps = deps; self.gap = None; self.dist = dist


def pack(mf, streams, fixed, g_first=-1, cap=2):
    n = len(mf)
    used = {}
    out = []
    for g, it, c in fixed:
        used[g] = used.get(g, 0) + c
    heads = [0] * len(streams)
    seqn = [0]
    fx = {}
    for g, it, c in fixed: fx.setdefault(g, []).append(it)
    for g in range(g_first, n):
        rem = cap - used.get(g, 0) - (1 if (g + 1 < n and mf[g + 1][0]) else 0)
        if g == n - 1 or g == g_first: rem = 10 ** 6
        pre = [it for it in fx.get(g, []) if getattr(it, "first", False)]
        for it in pre: out.append((g, seqn[0], it)); seqn[0] += 1
        while True:
            best = None
            for si, st in enumerate(streams):
                if heads[si] >= len(st): continue
                x = st[heads[si]]
                if x.lo > g: continue
                if any(d.gap is None or d.gap + x.dist > g for d in x.deps) and g != n - 1: continue
                forced = x.hi <= g
                if not forced and x.cost > rem: continue
                key = (0 if forced else 1, x.hi)
                if best is None or key < best[0]: best = (key, si, x)
            if best is None: break
            _, si, x = best
            x.gap = g; heads[si] += 1; rem -= x.cost
            out.append((g, seqn[0], x.it)); seqn[0] += 1
        for it in fx.get(g, []):
            if not getattr(it, "first", False): out.append((g, seqn[0], it)); seqn[0] += 1
    assert all(h == len(st) for h, st in zip(heads, streams)), heads
    return out


class Fn:
    def __init__(self, f, first=False): self.f = f; self.first = first
    def __call__(self): self.f()


def late_srds(P, stamps):
    if stamps:
        P(f"s_mov_b32 s56, s18\ns_mov_b32 s57, s19\ns_mov_b32 s58, 0x10000000\ns_mov_b32 s59, 0x20000")
    P(f"s_lshl_b32 s{sT+4}, s{sBH}, 18")
    P(f"s_add_u32 s{sK}, s6, s{sT+4}\ns_addc_u32 s{sK+1}, s7, 0\ns_mov_b32 s{sK+2}, 0x40000\ns_mov_b32 s{sK+3}, 0x20000")
    P(f"s_add_u32 s{sV}, s8, s{sT+4}\ns_addc_u32 s{sV+1}, s9, 0\ns_mov_b32 s{sV+2}, 0x40000\ns_mov_b32 s{sV+3}, 0x20000")
    P(f"s_lshr_b32 s{sT}, s{sH}, 2\ns_lshl_b32 s{sGr}, s{sT}, 12")
    P(f"s_mul_i32 s{sT+1}, s{sC}, 320\ns_mul_i32 s{sT+5}, s{sB}, 184320\ns_add_u32 s{sT+5}, s{sT+5}, s{sT+1}")
    P(f"s_add_u32 s{sOut}, s14, s{sT+5}\ns_addc_u32 s{sOut+1}, s15, 0\ns_mov_b32 s{sOut+2}, {143*1280+320}\ns_mov_b32 s{sOut+3}, 0x20000")
    P(f"s_mov_b32 s{sDbg}, s16\ns_mov_b32 s{sDbg+1}, s17\ns_mov_b32 s{sDbg+2}, 256\ns_mov_b32 s{sDbg+3}, 0x20000")
    P(f"s_mul_i32 s{sT+5}, s{sT}, {512*1280}\ns_add_u32 s{sT+5}, s{sT+5}, s{sT+1}")
    P(f"s_add_u32 s{sWo}, s12, s{sT+5}\ns_addc_u32 s{sWo+1}, s13, 0\ns_mov_b32 s{sWo+2}, {511*1280+320}\ns_mov_b32 s{sWo+3}, 0x20000")
    P(f"s_sub_u32 s{sT+5}, s{sBH}, s{sC}\ns_mul_i32 s{sT+5}, s{sT+5}, {O_STRIDE}")
    P(f"s_add_u32 s{sOg}, s18, s{sT+5}\ns_addc_u32 s{sOg+1}, s19, 0\ns_mov_b32 s{sOg+2}, {4*O_STRIDE}\ns_mov_b32 s{sOg+3}, 0x20000")
    P(f"s_lshl_b32 s{sT+5}, s{sB}, 2\ns_add_u32 s{sT+5}, s{sT+5}, s{sC}\ns_mul_i32 s{sT+5}, s{sT+5}, {8*PSTRIDE}\ns_add_u32 s{sT+5}, s{sT+5}, {PART}")
    P(f"s_add_u32 s{sP}, s18, s{sT+5}\ns_addc_u32 s{sP+1}, s19, 0\ns_mov_b32 s{sP+2}, {8*PSTRIDE}\ns_mov_b32 s{sP+3}, 0x20000")
    P(f"s_lshl_b32 s{sT+5}, s{sB}, 15\ns_add_u32 s{sT+5}, s{sT+5}, {FLAGS}")
    P(f"s_add_u32 s{sF}, s18, s{sT+5}\ns_addc_u32 s{sF+1}, s19, 0\ns_mov_b32 s{sF+2}, 32768\ns_mov_b32 s{sF+3}, 0x20000")


def setflag(P, vOne, off):
    P(f"s_lshl_b32 s{sT}, s{sH}, 10\ns_lshl_b32 s{sT+1}, s{sWv}, 7\ns_add_u32 s{sT}, s{sT}, s{sT+1}\ns_add_u32 s{sT}, s{sT}, {off}")
    P(f"v_mov_b32 {vOne}, 1")
    P("s_mov_b64 exec, 1")
    P(f"buffer_store_dword {vOne}, off, {srd(sF)}, s{sT} sc1")
    P("s_mov_b64 exec, -1")


def final(P, name, tag, cfg, l, T, R, ST, isC):
    t0, t7 = v(T[0]), v(T[7])
    sleep = cfg.get("sleep", 10)
    P(f"s_lshr_b32 s{sT+6}, s{sH}, 2")
    P(f"s_lshl_b32 s20, s{sWv}, 3\ns_add_u32 s20, s20, s{sT+6}")
    P(f"s_sub_u32 s21, 7, s{sWv}\ns_lshl_b32 s21, s21, 3\ns_add_u32 s21, s21, s{sT+6}")
    P(f"v_lshlrev_b32 {t7}, 4, {l}")
    P(f"v_and_b32 {t0}, 15, {l}\nv_mul_u32_u24 {t0}, 1280, {t0}\nv_bfe_u32 {v(T[1])}, {l}, 4, 1\nv_lshl_add_u32 {t0}, {v(T[1])}, 5, {t0}")
    P(f"v_lshrrev_b32 {v(T[1])}, 5, {l}\nv_lshl_add_u32 {v(T[6])}, {v(T[1])}, 4, {t0}")
    for r in range(2):
        sp = 20 + r
        P(f"s_cmp_ge_u32 s{sp}, 45\ns_cselect_b32 s{sp}, s20, s{sp}\ns_cselect_b32 s{26+r}, 0x1000000, 0")
        P(f"s_lshl_b32 s{sT}, s{sp}, 10\ns_add_u32 s{sT}, s{sT}, s{26+r}")
        P(f"v_add_u32 {v(T[1+r])}, s{sT}, {t7}")
        P(f"s_mul_i32 s{sT}, s{sp}, 52\ns_lshr_b32 s{sT}, s{sT}, 8")
        P(f"s_mul_i32 s{sT+1}, s{sT}, 5\ns_sub_u32 s{sT+1}, s{sp}, s{sT+1}\ns_lshl_b32 s{sT+1}, s{sT+1}, 6")
        P(f"s_mul_i32 s{sT+2}, s{sT}, 20480\ns_add_u32 s{sT+1}, s{sT+1}, s{sT+2}\ns_add_u32 s{sT+1}, s{sT+1}, s{26+r}")
        P(f"v_add_u32 {v(T[3+r])}, s{sT+1}, {v(T[6])}")
        P(f"s_mul_i32 s{22+r}, s{sT}, 86\ns_lshr_b32 s{22+r}, s{22+r}, 8\ns_lshl_b32 s{22+r}, s{22+r}, 7")
    P(f"v_mov_b32 {t0}, s22\nv_mov_b32 {v(T[5])}, s23\nv_and_b32 {v(T[6])}, 8, {l}\nv_cmp_eq_u32 vcc, 0, {v(T[6])}")
    P(f"v_cndmask_b32 {v(T[5])}, {v(T[5])}, {t0}, vcc")
    P(f"v_and_b32 {t0}, 7, {l}\nv_lshl_add_u32 {v(T[5])}, {t0}, 12, {v(T[5])}")
    if isC:
        P("s_waitcnt vmcnt(0)")
        setflag(P, v(T[6]), 512)
    P(f"s_lshl_b32 s{sT}, s{sC}, 10\ns_add_u32 s{sT}, s{sT}, 512")
    P(f"s_mov_b32 s{sT+5}, 0")
    P(f"s_mov_b64 exec, 0xffff")
    P(f"L_pl_{tag}_{name}:")
    P(f"buffer_load_dword {t0}, {v(T[5])}, {srd(sF)}, s{sT} offen sc1")
    P("s_waitcnt vmcnt(0)")
    P(f"v_cmp_eq_u32 vcc, 0, {t0}")
    P(f"s_add_u32 s{sT+5}, s{sT+5}, 1")
    P(f"s_cmp_ge_u32 s{sT+5}, {SPIN_MAX}\ns_cbranch_scc1 L_pld_{tag}_{name}")
    P(f"s_cbranch_vccz L_pld_{tag}_{name}")
    if sleep: P(f"s_sleep {sleep}")
    P(f"s_branch L_pl_{tag}_{name}")
    P(f"L_pld_{tag}_{name}:")
    P(f"s_mov_b64 exec, -1")
    ST()
    for r in range(2):
        for g in range(8):
            P(f"s_mov_b32 s{sOff}, {g*PSTRIDE}")
            P(f"buffer_load_dwordx4 {v(R+40*r+8+4*g,4)}, {v(T[1+r])}, {srd(sP)}, s{sOff} offen sc1")
    for r in range(2):
        B = R + 40 * r
        for g in range(8):
            for i in range(4):
                src = v(B+8+4*g+i)
                if g == 0:
                    P(f"v_lshlrev_b32 {v(B+2*i)}, 16, {src}\nv_and_b32 {v(B+2*i+1)}, 0xffff0000, {src}")
                else:
                    P(f"v_lshlrev_b32 {t0}, 16, {src}\nv_and_b32 {src}, 0xffff0000, {src}")
                    P(f"v_add_f32 {v(B+2*i)}, {v(B+2*i)}, {t0}\nv_add_f32 {v(B+2*i+1)}, {v(B+2*i+1)}, {src}")
        for i in range(4):
            P(f"v_cvt_pk_bf16_f32 {v(B+i)}, {v(B+2*i)}, {v(B+2*i+1)}")
        P(f"buffer_store_dwordx4 {v(B,4)}, {v(T[3+r])}, {srd(sOut)}, 0 offen")


def gen_C(name, stamps, cfg):
    LEAD = cfg.get("lead", 10)
    P = Prog()
    V = Alloc("v", 1, 256)
    A = Alloc("a", 0, 256)
    O = V.get(96, 4)
    S = [V.get(24, 4), V.get(24, 4)]
    PB = [V.get(12, 4), V.get(12, 4)]
    NEGM = V.get(12, 4)
    L = V.get(12, 4)
    TM = V.get(2, 2)
    T = [V.get() for _ in range(8)]
    vKr = [V.get() for _ in range(4)]
    vVr = [V.get() for _ in range(8)]
    vLane = V.get()
    vChk = V.get(); vPol = V.get(); vPa = V.get()
    pool = list(range(S[1], S[1] + 24))
    vXr = [pool.pop(0) for _ in range(2)]
    vWr = [pool.pop(0) for _ in range(8)]
    NFR = 16
    FR = [A.get(4) for _ in range(NFR)]
    XB = [A.get(4) for _ in range(12)]
    QF = A.get(48, 4)
    ONES = A.get(4)
    Ot = lambda dt, qt: O + 4 * (3 * dt + qt)
    St = lambda b, kt, qt: S[b] + 4 * (3 * kt + qt)
    Qf = lambda qt, kk: QF + 4 * (4 * qt + kk)
    if cfg.get("hst"): stamps = False
    ST = Stamps(P, stamps); ST.n = 1
    l = v(vLane)
    P(f"L_C_{name}:")
    late_srds(P, stamps)
    P(f"v_and_b32 {l}, 63, v0")
    l15, l4, rr, cc, g1 = (v(T[i]) for i in range(1, 6))
    t0, t6, t7 = v(T[0]), v(T[6]), v(T[7])
    P(f"v_and_b32 {l15}, 15, {l}\nv_lshrrev_b32 {l4}, 4, {l}\nv_bfe_u32 {rr}, {l}, 2, 2\nv_and_b32 {cc}, 3, {l}")
    P(f"v_bfe_u32 {g1}, {l}, 4, 1\nv_lshlrev_b32 {g1}, 1, {g1}")
    P(f"s_mul_i32 s{sT}, s{sWv}, 6144\ns_add_u32 s{sT}, s{sT}, {CB+2*CH}")
    P(f"v_lshrrev_b32 {t6}, 1, {l15}\nv_lshlrev_b32 {t7}, 7, {l15}\nv_add_u32 {t7}, s{sT}, {t7}")
    for k in range(2):
        P(f"v_add_u32 {t0}, {4*k}, {l4}\nv_xor_b32 {t0}, {t0}, {t6}")
        P(f"v_lshl_add_u32 {v(vXr[k])}, {t0}, 4, {t7}")
    P(f"v_lshrrev_b32 {t0}, 1, {cc}\nv_lshlrev_b32 {t7}, 2, {rr}\nv_xor_b32 {t0}, {t0}, {t7}\nv_xor_b32 {t0}, {t0}, {g1}")
    P(f"v_lshl_add_u32 {t7}, {l4}, 3, {rr}\nv_lshlrev_b32 {t7}, 8, {t7}\nv_and_b32 {t6}, 1, {cc}\nv_lshl_add_u32 {t7}, {t6}, 3, {t7}\nv_add_u32 {t7}, {XS+CB+2*CH}, {t7}")
    for d in range(8):
        P(f"v_xor_b32 {t6}, {2*d}, {t0}\nv_lshl_add_u32 {v(vWr[d])}, {t6}, 4, {t7}")
    P(f"v_lshl_add_u32 {t7}, {l4}, 2, {rr}\nv_lshlrev_b32 {t7}, 8, {t7}\nv_and_b32 {t6}, 1, {cc}\nv_lshl_add_u32 {t7}, {t6}, 3, {t7}\nv_add_u32 {t7}, {VB}, {t7}")
    for d in range(8):
        P(f"v_xor_b32 {t6}, {2*d}, {t0}\nv_lshl_add_u32 {v(vVr[d])}, {t6}, 4, {t7}")
    P(f"v_lshrrev_b32 {t6}, 5, {l}\nv_add_u32 {t6}, {t6}, {g1}")
    for kk in range(4):
        P(f"v_add_u32 {t0}, {4*kk}, {t6}\nv_xor_b32 {t0}, {t0}, {l15}\nv_lshlrev_b32 {t0}, 4, {t0}\nv_lshl_add_u32 {v(vKr[kk])}, {l15}, 8, {t0}")
    P(f"v_cmp_eq_u32 vcc, 0, {cc}\nv_mov_b32 {t0}, 0x3f803f80")
    P(f"v_cndmask_b32 {t0}, 0, {t0}, vcc")
    for i in range(4): P(f"v_accvgpr_write_b32 {a(ONES+i)}, {t0}")
    P(f"v_min_u32 {t0}, 2, {l}\ns_add_u32 s{sT}, s{sC}, 1\nv_add_u32 {t0}, s{sT}, {t0}\nv_and_b32 {t0}, 3, {t0}")
    P(f"s_lshl_b32 s{sT}, s{sWv}, 7\nv_lshlrev_b32 {t0}, 10, {t0}\nv_add_u32 {v(vPa)}, s{sT}, {t0}")
    P(f"s_mov_b32 s54, {f2u(QSCALE):#x}\ns_mov_b32 s55, {f2u(QSCALE):#x}")
    P(f"s_cmp_lg_u32 s{sWv}, 0\ns_cbranch_scc1 L_nors_{name}")
    P(f"s_lshl_b32 s{sT}, s{sH}, 10")
    P(f"v_lshlrev_b32 {t0}, 7, {l}\nv_mov_b32 {t7}, 0")
    P("s_mov_b64 exec, 0xff")
    P(f"buffer_store_dword {t7}, {t0}, {srd(sF)}, s{sT} offen sc1")
    P("s_mov_b64 exec, -1")
    P(f"L_nors_{name}:")
    sDl, sCnt = 30, 31
    P(f"s_mov_b32 s{sDl}, {-2*CH & 0xffffffff:#x}\ns_mov_b32 s{sCnt}, 0")
    for i in range(48): P(f"v_mov_b64 {v(O+2*i,2)}, 0")
    mark = lambda m: Fn(lambda: P.comment("@@" + m))

    mf = []
    RD, EX, CV, MX = [], [], [], []
    fixed = []
    frc = [0]
    def nfr():
        r = FR[frc[0] % NFR]; frc[0] += 1
        return r
    def bar(extra=None, drain=True):
        def f():
            if drain: P.wait_all(vm=False)
            P("s_barrier")
            if extra: extra()
        return Fn(f, True)
    LMIN, LMAX = cfg.get("lmin", 18), cfg.get("lmax", 27)
    assert LMAX <= 3 * (NFR - 1) - 1
    def rd(j, minr, tx, lmin=None):
        RD.append(Item(Ins(tx), 1, max(j - LMAX, minr), max(j - (lmin or LMIN), minr)))

    fixed.append((-1, bar(ST), 0))
    fixed.append((-1, mark("Q0"), 0))
    minr = -1
    loops = {}
    for ci in range(10):
        off = (ci % 2) * CH
        if ci == 2: loops["Q"] = (0, len(RD), 0, len(mf))
        xb = lambda k32, qt: XB[(6 * ci + 3 * k32 + qt) % 12]
        if ci < 9: order = [(k32, dt) for k32 in range(2) for dt in range(8)]
        else: order = [(k32, 2*j + t) for j in range(4) for k32 in range(2) for t in range(2)]
        seen = set()
        for (k32, dt) in order:
            j = len(mf)
            if k32 not in seen:
                seen.add(k32)
                for qt in range(3):
                    rd(j, minr, f"ds_read_b128 {a(xb(k32,qt),4)}, {v(vXr[k32])} offset:{off + 2048*qt}")
            fr = nfr()
            for r_ in range(2):
                rd(j, minr, f"ds_read_b64_tr_b16 {a(fr+2*r_,2)}, {v(vWr[dt])} offset:{off + (32*k32+4*r_)*256}")
            for qt in range(3):
                c = v(Ot(dt, qt), 4)
                mf.append(([a(fr, 4)] + [a(xb(k32, q_), 4) for q_ in range(3)] if qt == 0 else [], Ins(f"{MF} {v(Ot(dt,qt),4)}, {a(fr,4)}, {a(xb(k32,qt),4)}, {c}")))
            if ci == 9 and k32 == 1 and dt % 2 == 1:
                jj = dt // 2
                its = []
                for qt in range(3):
                    ta, tb = Ot(dt - 1, qt), Ot(dt, qt)
                    for b_ in (ta, ta + 2, tb, tb + 2):
                        its.append(f"v_pk_mul_f32 {v(b_,2)}, {v(b_,2)}, s[54:55]")
                    its += [f"v_cvt_pk_bf16_f32 {v(ta)}, {v(ta)}, {v(ta+1)}", f"v_cvt_pk_bf16_f32 {v(ta+1)}, {v(ta+2)}, {v(ta+3)}",
                            f"v_cvt_pk_bf16_f32 {v(tb)}, {v(tb)}, {v(tb+1)}", f"v_cvt_pk_bf16_f32 {v(tb+1)}, {v(tb+2)}, {v(tb+3)}"]
                for qt in range(3):
                    ta, tb = Ot(dt - 1, qt), Ot(dt, qt)
                    its += [f"v_permlane16_swap_b32 {v(ta)}, {v(tb)}", f"v_permlane16_swap_b32 {v(ta+1)}, {v(tb+1)}"]
                for qt in range(3):
                    ta, tb = Ot(dt - 1, qt), Ot(dt, qt)
                    for i, r_ in enumerate((ta, ta + 1, tb, tb + 1)):
                        its.append(f"v_accvgpr_write_b32 {a(Qf(qt,jj)+i)}, {v(r_)}")
                e = len(mf) - 1
                dl = 480 + 6 * jj - 2
                for k_, tx in enumerate(its):
                    CV.append(Item(Ins(tx), 1, e + 3, max(e + 3, dl)))
        gb = len(mf) - 1 - (LMIN - cfg.get("qbo", 5))
        fixed.append((gb, bar(), 2))
        minr = gb
        if ci % 2 == 1 and ci < 9:
            for r_ in vXr + vWr:
                RD.append(Item(Ins(f"v_add_u32 {v(r_)}, s{sDl}, {v(r_)}"), 1, -1, gb - 1))
            RD.append(Item(Ins(f"s_sub_u32 s{sDl}, 0, s{sDl}"), 1, -1, gb - 1))
            e = len(mf) - 1
            fixed.append((e - 1, Ins(f"s_add_u32 s{sCnt}, s{sCnt}, 1"), 1))
            fixed.append((e, Ins(f"s_cmp_lt_u32 s{sCnt}, 4"), 1))
            fixed.append((e, Ins(f"s_cbranch_scc1 L_qloop_{name}"), 1))
            fixed.append((e, mark(f"Q{(ci+1)//2}"), 0))
    g_q = len(mf) - 1
    for i in range(48): CV.append(Item(Ins(f"v_mov_b64 {v(O+2*i,2)}, 0"), 1, g_q, g_q + 46))
    for i in range(6): CV.append(Item(Ins(f"v_mov_b64 {v(L+2*i,2)}, 0"), 1, g_q, g_q + 46))
    def qdone():
        P(f"s_cmp_lg_u32 s{sWv}, 0\ns_cbranch_scc1 L_noat_{name}")
        P("s_waitcnt vmcnt(0)")
        P(f"v_mov_b32 {t7}, 1\ns_mov_b64 exec, 1")
        P(f"buffer_atomic_add {t7}, off, {srd(sDbg)}, 0 sc1")
        P("s_mov_b64 exec, -1")
        P(f"L_noat_{name}:")
        P(f"s_mov_b32 s{sCnt}, 0")
        ST()
    fixed.append((g_q, Fn(qdone), 2))

    def rowmax(dst, b, qt):
        s0, s1 = St(b, 0, qt), St(b, 1, qt)
        P(f"v_max3_f32 {dst}, {v(s0)}, {v(s0+1)}, {v(s0+2)}\nv_max3_f32 {dst}, {dst}, {v(s0+3)}, {v(s1)}")
        P(f"v_max3_f32 {dst}, {dst}, {v(s1+1)}, {v(s1+2)}\nv_max_f32 {dst}, {dst}, {v(s1+3)}")
        P(f"v_mov_b32 {t0}, {dst}\nv_permlane16_swap_b32 {dst}, {t0}\nv_max_f32 {dst}, {dst}, {t0}")
        P(f"v_mov_b32 {t0}, {dst}\nv_permlane32_swap_b32 {dst}, {t0}\nv_max_f32 {dst}, {dst}, {t0}\nv_ceil_f32 {dst}, {dst}")

    def init_main():
        for qt in range(3):
            d = v(T[1 + qt])
            rowmax(d, 0, qt)
            for i in range(4): P(f"v_sub_f32 {v(NEGM+4*qt+i)}, 0, {d}")
        for qt in range(3):
            d = v(T[1 + qt])
            for kt in range(2):
                for i in range(4): P(f"v_sub_f32 {v(St(0,kt,qt)+i)}, {v(St(0,kt,qt)+i)}, {d}")

    bar_gap = {-1: minr}
    def iteration(u, has_qk, has_pv, has_sm, do_bar):
        odd = (u % 2 != 0)
        s_ = (u + 1) // 2
        g0 = len(mf)
        minr = bar_gap.get(s_ - 1, -1)
        if has_qk:
            un = u + 1; b = un & 1
            for kk in range(4):
                for kt in range(2):
                    fr = nfr(); j = len(mf)
                    rd(j, minr, f"ds_read_b128 {a(fr,4)}, {v(vKr[kk])} offset:{slots[('K',s_ % 4)] + b*8192 + kt*4096}")
                    for qt in range(3):
                        c = v(St(b, kt, qt), 4) if kk else ("0" if un == 0 else v(NEGM + 4*qt, 4))
                        mf.append(([a(fr, 4)] if qt == 0 else [], Ins(f"{MF} {v(St(b,kt,qt),4)}, {a(fr,4)}, {a(Qf(qt,kk),4)}, {c}")))
        pv0 = len(mf)
        if has_pv:
            un = u - 1; b = un & 1; tv = un // 2
            so = slots[("V", tv % 4)] - VB
            for dt in range(8):
                fr = nfr(); j = len(mf)
                for r_ in range(2):
                    rd(j, minr, f"ds_read_b64_tr_b16 {a(fr+2*r_,2)}, {v(vVr[dt])} offset:{so + (32*b+16*r_)*256}")
                for qt in range(3):
                    mf.append(([a(fr, 4)] if qt == 0 else [], Ins(f"{MF} {v(Ot(dt,qt),4)}, {a(fr,4)}, {v(PB[b]+4*qt,4)}, {v(Ot(dt,qt),4)}")))
            for qt in range(3):
                mf.append(([], Ins(f"{MF} {v(L+4*qt,4)}, {a(ONES,4)}, {v(PB[b]+4*qt,4)}, {v(L+4*qt,4)}")))
        g1_ = len(mf) - 1
        span = g1_ - g0
        if has_sm:
            b = u & 1
            k_ = 0
            for qt in range(3):
                for kt in range(2):
                    s0 = St(b, kt, qt)
                    for h in range(2):
                        es = []
                        for z in range(2):
                            hi = g0 + min(span - 2, 6 + (k_ * (span - 8)) // 24 + cfg.get("exsl", 4)); k_ += 1
                            es.append(Item(Ins(f"v_exp_f32 {v(s0+2*h+z)}, {v(s0+2*h+z)}"), 2, g0, hi))
                        EX.extend(es)
                        CV.append(Item(Ins(f"v_cvt_pk_bf16_f32 {v(PB[b]+4*qt+2*kt+h)}, {v(s0+2*h)}, {v(s0+2*h+1)}"), 1, g0, g1_, es, 1))
        for z in range(cfg.get("diagpad", 0) if (has_qk and has_pv) else 0):
            fixed.append((g0 + 4 + 6 * z, Ins("s_nop 7"), 0))
        if do_bar:
            gb = g1_ - 14 if has_pv else g1_ - 11
            fixed.append((gb, bar(None, False), 1))
            bar_gap[s_] = g1_ - 14 if has_pv else gb
        if has_qk:
            if u == -1:
                fixed.append((g1_, Fn(init_main), 2))
            else:
                sb = S[(u + 1) & 1]
                mc = [f"v_max3_f32 {v(TM)}, {v(sb)}, {v(sb+1)}, {v(sb+2)}"]
                for i in range(3, 23, 2):
                    mc.append(f"v_max3_f32 {v(TM)}, {v(TM)}, {v(sb+i)}, {v(sb+i+1)}")
                mc.append(f"v_max_f32 {v(TM)}, {v(TM)}, {v(sb+23)}")
                mc.append(f"v_cmp_lt_f32 vcc, {f2u(THR):#x}, {v(TM)}")
                lo = min(pv0 + 1, g1_)
                for k_, tx in enumerate(mc):
                    MX.append(Item(Ins(tx), 1, lo, max(lo, g1_ - 1 - (12 - k_) // 2)))
                lab = f"L_ok_{name}_{'p' if u == 0 else (u - 1) % 8}"
                fixed.append((g1_, Ins(f"s_cbranch_vccz {lab}"), 1))
                fixed.append((g1_, Ins(f"s_call_b64 s[{sRet}:{sRet+1}], L_rare{'A' if odd else 'B'}_{name}"), 0))
                fixed.append((g1_, Ins(f"{lab}:"), 0))
        return g0, g1_
    def group_waits(mf, WG):
        idx = [i for i, (pre, I) in enumerate(mf) if pre]
        for k in range(0, len(idx), WG):
            pp = []
            for q in idx[k:k + WG]: pp += mf[q][0]
            mf[idx[k]] = (pp, mf[idx[k]][1])
            for q in idx[k + 1:k + WG]: mf[q] = ([], mf[q][1])
    for u in range(-1, 26):
        if u == 1: la = (len(RD), len(mf))
        if u == 9: loops["A"] = (la[0], len(RD), la[1], len(mf))
        g0, g1_ = iteration(u, True, u >= 1, u >= 0, u % 2 == 0)
        if u >= 0 and u % 8 == 0:
            if u > 0:
                fixed.append((g1_, Ins(f"s_branch L_aloop_{name}"), 1))
            fixed.append((g1_, mark(f"A{u//8}"), 0))
        if u > 0 and u % 8 == 6:
            fixed.append((g1_ - 2, Ins(f"s_add_u32 s{sCnt}, s{sCnt}, 1"), 1))
            fixed.append((g1_ - 1, Ins(f"s_cmp_eq_u32 s{sCnt}, 4"), 1))
            fixed.append((g1_, Ins(f"s_cbranch_scc1 L_tail_{name}"), 1))
            fixed.append((g1_, mark(f"X{u//8}"), 0))
    group_waits(mf, 4)
    pack(mf, [RD, EX, CV, MX], fixed)
    for (r0, r1, g_0, g_1) in (loops["Q"], loops["A"]):
        n = r1 - r0
        for i in range(n):
            rel = RD[r1 + i].gap - g_1
            x = RD[r0 + i]
            if rel >= 0: x.lo = max(x.lo, g_0)
            else: x.hi = min(x.hi, g_0 - 1); x.lo = min(x.lo, x.hi)
    for st_ in (RD, EX, CV, MX):
        for x in st_: x.gap = None
    merge(P, mf, pack(mf, [RD, EX, CV, MX], fixed))
    cut = next(i for i, it in enumerate(P.items) if isinstance(it, tuple) and it[0] == "comment" and it[1] == "@@X2")
    del P.items[cut + 1:]
    P(f"L_tail_{name}:")
    mf.clear(); RD.clear(); EX.clear(); CV.clear(); MX.clear(); fixed.clear(); bar_gap.clear()
    frc[0] = 8
    iteration(31, False, True, True, False)
    g0, g1_ = iteration(32, False, True, False, False)
    fixed.append((g0, Ins(f"buffer_load_dword {v(vPol)}, {v(vPa)}, {srd(sF)}, s{sGr} offen sc1"), 1))
    group_waits(mf, 2)
    merge(P, mf, pack(mf, [RD, EX, CV, MX], fixed))
    ST()

    STo = ST
    if cfg.get("ast") or cfg.get("cyc") or cfg.get("qst"): ST = lambda: None
    sleep = cfg.get("sleep", 10)
    OWN = O
    ACC = O + 48
    assert ACC + 120 <= NEGM
    At = lambda t, qt: ACC + 4 * (3 * t + qt)
    PF0 = 64
    assert FR[-1] + 4 <= PF0
    pf = lambda p, qt, j: a(PF0 + 48*p + 4*(4*qt + j), 4)
    TMP = NEGM
    vRb = vVr[0:2]; vR = vVr[2:4]
    vSt, vSp, vOne = T[4], T[5], T[6]
    sVal, sDone, sPen, sPo, sLd = 20, 21, 25, 22, 26
    P("s_barrier")
    P(f"s_mul_i32 s{sT}, s{sWv}, 12288")
    P(f"v_lshlrev_b32 {t7}, 4, {l}\nv_add_u32 {v(vSt)}, s{sT}, {t7}")
    P(f"s_mul_i32 s{sT+1}, s{sC}, {O_STRIDE}\ns_add_u32 s{sT+2}, s{sT+1}, 4096\ns_add_u32 s{sT+3}, s{sT+1}, 8192")
    for qt in range(3):
        P(f"v_rcp_f32 {v(L+4*qt)}, {v(L+4*qt)}")
    Ow = lambda qt, j: O + 4 * (3 * j + qt)
    for j in range(4):
        for qt in range(3):
            for t_ in (Ot(2*j, qt), Ot(2*j + 1, qt)):
                for h in range(2):
                    P(f"v_pk_mul_f32 {v(t_+2*h,2)}, {v(t_+2*h,2)}, {v(L+4*qt,2)} op_sel_hi:[1,0]")
        for qt in range(3):
            ta, tb = Ot(2*j, qt), Ot(2*j + 1, qt)
            d = Ow(qt, j)
            P(f"v_cvt_pk_bf16_f32 {v(d)}, {v(ta)}, {v(ta+1)}\nv_cvt_pk_bf16_f32 {v(d+1)}, {v(ta+2)}, {v(ta+3)}")
            P(f"v_cvt_pk_bf16_f32 {v(d+2)}, {v(tb)}, {v(tb+1)}\nv_cvt_pk_bf16_f32 {v(d+3)}, {v(tb+2)}, {v(tb+3)}")
            P(f"buffer_store_dwordx4 {v(d,4)}, {v(vSt)}, {srd(sOg)}, s{sT+1+qt} offen offset:{1024*j} sc1", tok="ost")
    P(f"v_lshrrev_b32 {t0}, 2, {l}\nv_mul_u32_u24 {t0}, 320, {t0}\nv_and_b32 {t6}, 3, {l}\nv_lshl_add_u32 {t0}, {t6}, 3, {t0}")
    P(f"v_bfe_u32 {t6}, {l}, 4, 1\nv_lshl_add_u32 {v(vRb[0])}, {t6}, 5, {t0}\nv_xor_b32 {t6}, 1, {t6}\nv_lshl_add_u32 {v(vRb[1])}, {t6}, 5, {t0}")
    P(f"v_add_u32 {v(vR[0])}, {WOQ[0]}, {v(vRb[0])}\nv_add_u32 {v(vR[1])}, {WOQ[0]}, {v(vRb[1])}")
    for i in range(60): P(f"v_mov_b64 {v(ACC+2*i,2)}, 0")
    for p in range(3):
        P(f"s_add_u32 s{sPo+p}, s{sC}, {p+1}\ns_and_b32 s{sPo+p}, s{sPo+p}, 3\ns_mul_i32 s{sPo+p}, s{sPo+p}, {O_STRIDE}")
    P(f"s_mul_i32 s{sT}, s{sWv}, 15360\nv_add_u32 {v(vSp)}, s{sT}, {t7}")
    P(f"v_add_u32 {v(T[1])}, 4096, {v(vSt)}\nv_add_u32 {v(T[2])}, 8192, {v(vSt)}")
    vStq = [vSt, T[1], T[2]]
    P(f"s_lshr_b32 s28, s{sH}, 2\ns_mul_i32 s28, s28, {PSTRIDE}")
    P("s_waitcnt vmcnt(12)")
    P(f"v_cmp_ne_u32 vcc, 0, {v(vPol)}")
    P(f"s_mov_b32 s{sDone}, 0\ns_mov_b32 s{sVal}, 0")
    P(f"s_and_b32 s{sPen}, vcc_lo, 7")
    ST()
    sMode, sGr2 = 29, 32
    svc = lambda: P(f"s_call_b64 s[{sLd}:{sLd+1}], L_svc_{name}")
    pol = lambda: P(f"s_mov_b64 exec, 7\nbuffer_load_dword {v(vPol)}, {v(vPa)}, {srd(sF)}, s{sGr} offen sc1\ns_mov_b64 exec, -1")
    def polchk():
        P("s_waitcnt vmcnt(0)")
        P(f"v_cmp_ne_u32 vcc, 0, {v(vPol)}")
        P(f"s_and_b32 s{sPen}, vcc_lo, 7\ns_andn2_b32 s{sPen}, s{sPen}, s{sVal}")
    P(f"s_mov_b32 s{sMode}, 0\ns_mov_b32 s{sT+5}, 0")
    P(f"L_gemm_{name}:")
    mf = []; RDb = []; fx = []
    nm = [(j, 2*k + t) for k in range(5) for j in range(4) for t in range(2)]
    for (j, t) in nm:
        fr = nfr(); jx = len(mf)
        for r_ in range(2):
            RDb.append(Item(Ins(f"ds_read_b64_tr_b16 {a(fr+2*r_,2)}, {v(vR[t&1])} offset:{(32*j+16*r_)*320 + 64*(t//2)}"), 1, max(jx - 20, -1), max(jx - 14, -1)))
        for qt in range(3):
            mf.append(([a(fr, 4)] if qt == 0 else [], Ins(f"{MF} {v(At(t,qt),4)}, {a(fr,4)}, {v(Ow(qt,j),4)}, {v(At(t,qt),4)}")))
    group_waits(mf, 2)
    def hook(k):
        def f():
            P(f"s_call_b64 s[{sGr2}:{sGr2+1}], L_hk{k}_{name}")
        return Fn(f)
    for k in range(4): fx.append((24*k + 23 + 4, hook(k), 2))
    fx.append((2, Fn(svc), 2)); fx.append((12, Fn(svc), 2)); fx.append((20, Fn(svc), 2))
    fx.append((106, Fn(svc), 2)); fx.append((113, Fn(svc), 2))
    merge(P, mf, pack(mf, [RDb], fx))
    P(f"s_cmp_eq_u32 s{sMode}, 2\ns_cbranch_scc1 L_fin_{name}")
    P(f"s_cmp_eq_u32 s{sMode}, 0\ns_cbranch_scc0 L_disp_{name}")
    P(f"s_mov_b32 s{sMode}, 1")
    P("s_barrier")
    ST()
    P(f"L_disp_{name}:")
    P(f"s_andn2_b32 s{sT}, s{sVal}, s{sDone}")
    P(f"s_cbranch_scc1 L_go_{name}")
    pol()
    polchk()
    P(f"s_add_u32 s{sT+5}, s{sT+5}, 1\ns_andn2_b32 s{sT+1}, 7, s{sVal}\ns_cmp_ge_u32 s{sT+5}, {SPIN_MAX}\ns_cselect_b32 s{sPen}, s{sT+1}, s{sPen}")
    svc(); svc(); svc()
    P(f"s_andn2_b32 s{sT}, s{sVal}, s{sDone}")
    P(f"s_cbranch_scc1 L_go_{name}")
    if sleep: P(f"s_sleep {sleep}")
    P(f"s_branch L_disp_{name}")
    P(f"L_go_{name}:")
    P(f"s_ff1_i32_b32 s{sT}, s{sT}")
    P(f"s_bitset1_b32 s{sDone}, s{sT}")
    P(f"s_cmp_eq_u32 s{sDone}, 7\ns_cselect_b32 s{sMode}, 2, 1")
    P(f"s_mul_i32 s{sT+1}, s{sT}, 40960\ns_add_u32 s{sT+1}, s{sT+1}, 40960")
    assert WOQ == [0, 40960, 81920, 122880]
    P(f"v_add_u32 {v(vR[0])}, s{sT+1}, {v(vRb[0])}\nv_add_u32 {v(vR[1])}, s{sT+1}, {v(vRb[1])}")
    P("s_waitcnt vmcnt(0)")
    P(f"s_cmp_eq_u32 s{sT}, 1\ns_cbranch_scc1 L_c1_{name}")
    P(f"s_cmp_eq_u32 s{sT}, 2\ns_cbranch_scc1 L_c2_{name}")
    for p in range(3):
        P(f"L_c{p}_{name}:")
        for j in range(4):
            for qt in range(3):
                for i in range(4):
                    P(f"v_accvgpr_read_b32 {v(Ow(qt,j)+i)}, {a(PF0 + 48*p + 4*(4*qt+j) + i)}")
        P(f"s_branch L_gemm_{name}")
    def outp(k):
        for qt in range(3):
            ta, tb = At(2*k, qt), At(2*k + 1, qt)
            P(f"v_cvt_pk_bf16_f32 {v(ta)}, {v(ta)}, {v(ta+1)}\nv_cvt_pk_bf16_f32 {v(ta+1)}, {v(ta+2)}, {v(ta+3)}")
            P(f"v_cvt_pk_bf16_f32 {v(ta+2)}, {v(tb)}, {v(tb+1)}\nv_cvt_pk_bf16_f32 {v(ta+3)}, {v(tb+2)}, {v(tb+3)}")
        for qt in range(3):
            ta = At(2*k, qt)
            P(f"v_permlane16_swap_b32 {v(ta)}, {v(ta+2)}\nv_permlane16_swap_b32 {v(ta+1)}, {v(ta+3)}")
            P(f"s_add_u32 s{sOff}, s28, {(5*qt + k)*1024}")
            P(f"buffer_store_dwordx4 {v(ta,4)}, {v(vSp)}, {srd(sP)}, s{sOff} offen sc1")
    ret2 = f"s_setpc_b64 s[{sGr2}:{sGr2+1}]"
    for k in range(4):
        P(f"L_hk{k}_{name}:")
        P(f"s_cmp_eq_u32 s{sMode}, 2\ns_cbranch_scc1 L_ho{k}_{name}")
        if k == cfg.get("f1k", 1):
            P(f"s_cmp_eq_u32 s{sMode}, 0\ns_cbranch_scc0 L_hp_{name}")
            P(f"s_bcnt1_i32_b32 s{sT}, s{sVal}")
            P(f"s_cmp_eq_u32 s{sT}, 3\ns_cbranch_scc1 L_f1c_{name}")
            P(f"s_cmp_eq_u32 s{sT}, 2\ns_cbranch_scc1 L_f1b_{name}")
            P(f"s_cmp_eq_u32 s{sT}, 1\ns_cbranch_scc1 L_f1a_{name}")
            P("s_waitcnt vmcnt(0)")
            P(f"L_f1a_{name}:\ns_waitcnt vmcnt(12)\nL_f1b_{name}:\ns_waitcnt vmcnt(24)\nL_f1c_{name}:\ns_waitcnt vmcnt(36)")
            setflag(P, v(vOne), 0)
            P(f"L_hp_{name}:")
            pol()
        if k == 3:
            polchk()
            svc()
        P(ret2)
        P(f"L_ho{k}_{name}:")
        outp(k)
        P(ret2)
    P(f"L_fin_{name}:")
    P("s_nop 7")
    outp(4)
    ST()
    final(P, name, "C", cfg, l, T, O, ST, True)
    if stamps:
        P(f"s_cmp_lg_u32 s{sWv}, 0\ns_cbranch_scc1 L_end_{name}")
        STo.out(P, t0, t7, f"L_end_{name}")
    P(f"L_end_{name}:\ns_endpgm")

    P(f"L_svc_{name}:")
    P(f"s_cmp_eq_u32 s{sPen}, 0\ns_cbranch_scc1 L_svd_{name}")
    P(f"s_bitcmp1_b32 s{sPen}, 0\ns_cbranch_scc1 L_sv0_{name}")
    P(f"s_bitcmp1_b32 s{sPen}, 1\ns_cbranch_scc1 L_sv1_{name}")
    for p in (2, 1, 0):
        P(f"L_sv{p}_{name}:")
        P(f"s_bitset0_b32 s{sPen}, {p}\ns_bitset1_b32 s{sVal}, {p}")
        for j in range(4):
            for qt in range(3):
                P(f"buffer_load_dwordx4 {pf(p,qt,j)}, {v(vStq[qt])}, {srd(sOg)}, s{sPo+p} offen offset:{1024*j} sc1")
        if p: P(f"s_setpc_b64 s[{sLd}:{sLd+1}]")
    P(f"L_svd_{name}:")
    P(f"s_setpc_b64 s[{sLd}:{sLd+1}]")
    P("s_waitcnt vmcnt(0)")

    def rare(lab, b):
        pb = PB[b ^ 1]
        P(f"{lab}:")
        P.fence()
        d, f = v(T[1]), v(T[2])
        for qt in range(3):
            rowmax(d, b, qt)
            P(f"v_max_f32 {d}, 0, {d}\nv_exp_f32 {f}, -{d}")
            for kt in range(2):
                for i in range(4): P(f"v_sub_f32 {v(St(b,kt,qt)+i)}, {v(St(b,kt,qt)+i)}, {d}")
            for i in range(4): P(f"v_sub_f32 {v(NEGM+4*qt+i)}, {v(NEGM+4*qt+i)}, {d}")
            P(f"v_mul_f32 {v(L+4*qt)}, {v(L+4*qt)}, {f}")
            for dt in range(8):
                for i in range(4): P(f"v_mul_f32 {v(Ot(dt,qt)+i)}, {v(Ot(dt,qt)+i)}, {f}")
            for i in range(4):
                r_ = v(pb + 4*qt + i)
                P(f"v_lshlrev_b32 {v(T[3])}, 16, {r_}\nv_and_b32 {v(T[4])}, 0xffff0000, {r_}")
                P(f"v_mul_f32 {v(T[3])}, {v(T[3])}, {f}\nv_mul_f32 {v(T[4])}, {v(T[4])}, {f}")
                P(f"v_cvt_pk_bf16_f32 {r_}, {v(T[3])}, {v(T[4])}")
        P("s_nop 3")
        P(f"s_setpc_b64 s[{sRet}:{sRet+1}]")
    rare(f"L_rareA_{name}", 0)
    rare(f"L_rareB_{name}", 1)
    st = {}
    body = P.render(st)
    def seg(m0, m1):
        i0 = body.index(f"  ; @@{m0}\n") + len(f"  ; @@{m0}\n")
        return body[i0:body.index(f"  ; @@{m1}\n")]
    import re as _re
    strip = lambda t: _re.sub(r"  ; @@\w+\n", "", t)
    open("lin.s", "w").write(body)
    for k in range(1, 4):
        assert seg("Q0", "Q1") == seg(f"Q{k}", f"Q{k+1}"), f"qloop body {k} differs"
    assert strip(seg("A0", "A1")) == strip(seg("A1", "A2")), "aloop body differs"
    assert seg("A0", "X0") == seg("A2", "X2"), "aloop exit prefix differs"
    h = lambda m: body.index(f"  ; @@{m}\n")
    body = (body[:h("Q0")] + f".p2align 6\nL_qloop_{name}:\n" + seg("Q0", "Q1") + seg("Q4", "A0") + f".p2align 6\nL_aloop_{name}:\n" + seg("A0", "A1")
            + body[h("X2"):])
    if cfg.get("align", 1):
        from align import realign
        body = realign(".p2align 3\n" + body)
    print(f"C: vgpr {V.hi} agpr {A.hi} lines {body.count(chr(10))}")
    return body


def gen_H(name, stamps, cfg):
    kvflag = cfg.get("kvflag", " nt")
    P = Prog()
    V = Alloc("v", 1, 256)
    R = V.get(80, 4)
    T = [V.get() for _ in range(8)]
    vLane = V.get()
    vXd = [V.get() for _ in range(4)]
    vWd = [V.get() for _ in range(4)]
    vKd = [V.get() for _ in range(4)]
    vVd = [V.get() for _ in range(2)]
    vD = [V.get() for _ in range(5)]
    DUM = V.get(4)
    vWrt = [V.get() for _ in range(3)]
    l = v(vLane)
    l15, l4 = v(T[1]), v(T[2])
    t0, t6, t7 = v(T[0]), v(T[6]), v(T[7])
    P(f"v_and_b32 {l}, 63, v0")
    P(f"v_and_b32 {l15}, 15, {l}\nv_lshrrev_b32 {l4}, 4, {l}")
    P(f"v_lshrrev_b32 {t7}, 3, {l}\nv_mul_u32_u24 {t7}, 1280, {t7}")
    P(f"v_xor_b32 {t0}, {l4}, {l}\nv_and_b32 {t0}, 7, {t0}")
    P(f"v_lshl_add_u32 {v(vXd[0])}, {t0}, 4, {t7}")
    P(f"v_xor_b32 {t0}, 4, {t0}\nv_lshl_add_u32 {v(vXd[1])}, {t0}, 4, {t7}\nv_add_u32 {v(vXd[1])}, 9216, {v(vXd[1])}")
    P(f"v_add_u32 {v(vXd[2])}, 18432, {v(vXd[0])}\nv_add_u32 {v(vXd[3])}, 18432, {v(vXd[1])}")
    P(f"v_lshlrev_b32 {t0}, 2, {l4}\nv_xor_b32 {t0}, {t0}, {l15}\nv_lshlrev_b32 {t7}, 13, {l4}")
    P(f"v_lshl_add_u32 {v(vWd[0])}, {t0}, 4, {t7}\nv_add_u32 {v(vWd[1])}, 31744, {v(vWd[0])}")
    P(f"v_xor_b32 {t6}, 2, {t0}\nv_lshl_add_u32 {t6}, {t6}, 4, {t7}\nv_add_u32 {v(vWd[2])}, {2*31744}, {t6}\nv_add_u32 {v(vWd[3])}, {3*31744}, {t6}")

    occ = []
    def free_ev(lo, hi):
        e = -1
        for (s0, s1, ev) in occ:
            if s0 < hi and lo < s1: e = max(e, ev)
        return e
    Qu = []
    def add(lds, n, pre, ins, need):
        Qu.append(dict(lds=lds, pre=pre, ins=ins, need=need, ok=(free_ev(lds, lds + 1024*n) if lds is not None else -1)))
    for ci in range(10):
        base = chbase(ci)
        for g in range(5):
            n = 4 if g < 4 else 2
            add(base + 4096*g, n, (f"s_lshl_b32 s{sOff}, s{sRot+ci}, 7" if g == 0 else f"s_add_u32 s{sOff}, s{sOff}, 40960 ; {ci} {g}"),
                [f"buffer_load_dwordx4 {v(vXd[j])}, {srd(sX)}, s{sOff} offen offset:{1024*j} lds" for j in range(n)], ci)
        for g in range(4):
            add(base + XS + 4096*g, 4, (f"s_lshl_b32 s{sOff}, s{sRot+ci}, 19" if g == 0 else f"s_add_u32 s{sOff}, s{sOff}, 131072 ; {ci} {g}"),
                [f"buffer_load_dwordx4 {v(vWd[j])}, {srd(sW)}, s{sOff} offen offset:{1024*j} lds" for j in range(4)], ci)
        occ.append((base, base + CH, ci + 1))
    nq = len(Qu)
    sKr = 92
    def kvpre(t, g):
        if g: return f"s_add_u32 s{sOff}, s{sOff}, 4096 ; {t} {g}"
        return f"s_add_u32 s{sOff}, s{sKr}, {t*SLOT}\ns_and_b32 s{sOff}, s{sOff}, 0x3ffff"
    order = list(seq)
    early = cfg.get("early", [])
    pfi = 0
    for i, (kind, t) in enumerate(order):
        ad = slots[(kind, t)]
        need = (10 + t) if kind == "K" else (11 + t)
        for g in range(4):
            vo = lambda j: v(vKd[j]) if kind == 'K' else v(vVd[j & 1])
            sr = srd(sK if kind == 'K' else sV)
            if i in early:
                rb = 64 * early.index(i) + 16 * g
                assert free_ev(ad, ad + SLOT) < need
                add(None, 4, kvpre(t, g),
                    [f"buffer_load_dwordx4 {a(rb+4*j,4)}, {vo(j)}, {sr}, s{sOff} offen offset:{1024*j}{kvflag}" for j in range(4)], need)
                Qu[-1]["wr"] = [f"ds_write_b128 {v(vWrt[(ad + 4096*g) >> 16])}, {a(rb+4*j,4)} offset:{((ad + 4096*g) & 0xffff) + 1024*j}" for j in range(4)]
            else:
                add(ad + 4096*g, 4, kvpre(t, g),
                    [f"buffer_load_dwordx4 {vo(j)}, {sr}, s{sOff} offen offset:{1024*j}{kvflag} lds" for j in range(4)], need)
        occ.append((ad, ad + SLOT, (11 + t) if kind == "K" else min(12 + t, E1)))
        for _ in range(cfg.get("pfn", 1)):
          if i >= cfg.get("pf0", 6) and pfi < 20:
            add(None, 1, f"s_mul_i32 s{sOff}, s{sB}, {64*1280}\ns_add_u32 s{sOff}, s{sOff}, {(pfi//5)*16*1280}",
                [f"buffer_load_dwordx4 {v(DUM,4)}, {v(vD[pfi%5])}, {srd(sWo)}, s{sOff} offen{cfg.get('pfflag','')}"], None)
            pfi += 1
    nkv = len(Qu)
    wq = []
    for q in range(4):
        for e in range(40):
            wq.append((q, e, free_ev(WOQ[q] + 1024*e, WOQ[q] + 1024*(e+1))))
    wq.sort(key=lambda x: (max(x[2], 24 if x[0] == 0 else cfg.get('wosort', 25)), x[0], x[1]))
    for q, e, _ in wq:
        add(WOQ[q] + 1024*e, 1, f"s_add_u32 s{sOff}, s{sRot+q}, {(e//5)*16*1280}",
            [f"buffer_load_dwordx4 {v(vD[e%5])}, {srd(sWo)}, s{sOff} offen{cfg.get('woflag','')} lds"], E1 if q == 0 else E2)

    issued = [0]; cnt = [0]; waited = [0]
    ends = []
    lastpre = [None]
    def issue_one():
        g = Qu[issued[0]]
        if g["lds"] is not None: P(f"s_mov_b32 m0, {g['lds']}")
        if g["pre"] != lastpre[0]: P(g["pre"]); lastpre[0] = g["pre"]
        for tx in g["ins"]:
            if cfg.get("nokv") and nq + 40 <= issued[0] < nkv: continue
            P(tx, tok=issued[0])
            if g["lds"] is None: P.items[-1].wr = []
        cnt[0] += len(g["ins"]); ends.append(cnt[0]); issued[0] += 1
    def refill(e):
        while issued[0] < len(Qu):
            g = Qu[issued[0]]
            W = cfg.get("Wq", 60) if issued[0] < nq else (cfg.get("W", 48) if (issued[0] < nkv and g["lds"] is not None) else (cfg.get("Wwo", 32) if e < E1 else 60))
            if e == 0: W = cfg.get("W0", 60)
            if g["ok"] >= e: break
            if issued[0] >= nq and e < cfg.get("kvstart", 0): break
            if cnt[0] + len(g["ins"]) - waited[0] > W: break
            issue_one()
    def wait_group(i):
        if ends[i] > waited[0]:
            P.wait_tok(i); waited[0] = ends[i]

    refill(0)
    hst = cfg.get("hst") if stamps else None
    late_srds(P, bool(hst))
    HS = Stamps(P, bool(hst)); HS.n = 1
    lastpre[0] = None
    P(f"s_mul_i32 s{sKr}, s{sBH}, {cfg.get('kvrot', 0)}\ns_and_b32 s{sKr}, s{sKr}, 15\ns_lshl_b32 s{sKr}, s{sKr}, 14")
    P(f"v_lshlrev_b32 {v(vWrt[0])}, 4, {l}\nv_add_u32 {v(vWrt[1])}, 65536, {v(vWrt[0])}\nv_add_u32 {v(vWrt[2])}, 131072, {v(vWrt[0])}")
    P(f"v_lshlrev_b32 {t7}, 8, {l4}")
    for n in range(4):
        P(f"v_add_u32 {t0}, {4*n}, {l4}\nv_xor_b32 {t0}, {t0}, {l15}\nv_lshl_add_u32 {v(vKd[n])}, {t0}, 4, {t7}")
    P(f"v_lshlrev_b32 {t0}, 2, {l4}\nv_xor_b32 {t0}, {t0}, {l15}")
    for n in range(2):
        P(f"v_xor_b32 {t6}, {2*n}, {t0}\nv_lshl_add_u32 {v(vVd[n])}, {t6}, 4, {t7}")
    for i in range(5):
        P(f"v_add_u32 {t0}, {64*i}, {l}")
        P(f"v_mul_u32_u24 {t7}, 3277, {t0}\nv_lshrrev_b32 {t7}, 16, {t7}")
        P(f"v_mul_u32_u24 {t6}, 20, {t7}\nv_sub_u32 {t6}, {t0}, {t6}")
        P(f"v_bfe_u32 {t0}, {t7}, 2, 1\nv_lshlrev_b32 {t0}, 1, {t0}\nv_xor_b32 {t6}, {t6}, {t0}")
        P(f"v_mul_u32_u24 {t7}, 1280, {t7}\nv_lshl_add_u32 {v(vD[i])}, {t6}, 4, {t7}")
    for e in range(0, E2 + 1):
        P.comment(f"H epoch {e}")
        if e == 11:
            for q in range(4):
                P(f"s_add_u32 s{sRot+q}, s{sC}, {q}\ns_and_b32 s{sRot+q}, s{sRot+q}, 3\ns_mul_i32 s{sRot+q}, s{sRot+q}, {128*1280}")
        if e == cfg.get("chke", 21):
            P(f"s_load_dword s{sT+6}, s[{sDbg}:{sDbg+1}], 0 glc")
        refill(e)
        if e == cfg.get("chke", 21) + 1:
            P(f"s_mov_b32 s{sT+5}, 0")
            P(f"s_cmp_ge_u32 s{sT+6}, 256\ns_cbranch_scc1 L_scd_{name}")
            P(f"L_sc_{name}:")
            I_ = Ins(f"buffer_load_dword {t0}, off, {srd(sDbg)}, 0 sc1"); I_.kind = "ctl"; P.add(I_)
            I_ = Ins("s_waitcnt vmcnt(0)"); I_.kind = "ctl"; P.add(I_)
            P(f"v_readfirstlane_b32 s{sT+6}, {t0}")
            P(f"s_add_u32 s{sT+5}, s{sT+5}, 1")
            P(f"s_cmp_ge_u32 s{sT+5}, {SPIN_MAX}\ns_cbranch_scc1 L_scd_{name}")
            P(f"s_cmp_lt_u32 s{sT+6}, 256\ns_cbranch_scc1 L_sc_{name}")
            P(f"L_scd_{name}:")
        needs = [i for i, g in enumerate(Qu) if g["need"] == e]
        if needs:
            last = max(needs)
            ah = cfg.get("ahead", {}).get(str(e), 0)
            if ah: last = min(last + ah, nq - 1) if last < nq else last
            i = 0
            while i <= last:
                if i >= issued[0]:
                    raise RuntimeError(f"epoch {e}: group {i} not issued")
                if ends[i] > waited[0] and (i == last or ends[i] - waited[0] >= cfg.get('wgran', 8)):
                    wait_group(i)
                    refill(e)
                if Qu[i]["need"] == e and "wr" in Qu[i]:
                    wait_group(i)
                    for tx in Qu[i]["wr"]: P(tx)
                i += 1
            P.wait_all(vm=False)
        if hst and -e in hst: HS()
        P("s_barrier")
        if hst and e in hst: HS()
    assert issued[0] == len(Qu)
    final(P, name, "H", cfg, l, T, R, lambda: None, False)
    if hst:
        assert HS.n <= 9
        P(f"v_and_b32 v0, 63, v0")
        HS.out(P, t0, t7, f"L_end_{name}")
    P("s_endpgm")
    st = {}
    body = P.render(st)
    print(f"H: vgpr {V.hi} stats {st}")
    return body


def gen_k1(name, stamps=False, cfg=None):
    cfg = dict(cfg or {})
    Stamps.cyc = bool(cfg.get("cyc"))
    P = Prog()
    P(f"s_cmp_ge_u32 s2, 256\ns_cbranch_scc1 L_end_{name}")
    P("s_load_dwordx8 s[4:11], s[0:1], 0")
    P("s_load_dwordx8 s[12:19], s[0:1], 32")
    if stamps:
        P("s_memrealtime s[60:61]")
    P("v_lshrrev_b32 v1, 6, v0")
    P(f"s_and_b32 s{sT}, s2, 7\ns_bfe_u32 s{sC}, s2, 0x20003\ns_lshr_b32 s{sB}, s2, 5")
    P(f"v_readfirstlane_b32 s{sWv}, v1")
    P(f"s_lshl_b32 s{sH}, s{sT}, 2\ns_add_u32 s{sH}, s{sH}, s{sC}")
    P(f"s_lshl_b32 s{sBH}, s{sB}, 5\ns_add_u32 s{sBH}, s{sBH}, s{sH}")
    P(f"s_cmp_lt_u32 s{sWv}, 3\ns_cbranch_scc1 L_Cw_{name}")
    P(f"s_mul_i32 s{sT}, s{sB}, 5\ns_lshr_b32 s{sT}, s{sT}, 2\ns_mul_i32 s{sT+1}, s{sC}, 5\ns_lshr_b32 s{sT+1}, s{sT+1}, 1\ns_add_u32 s{sT}, s{sT}, s{sT+1}")
    P(f"s_sub_u32 s{sT+1}, s{sT}, 10\ns_cmp_ge_u32 s{sT}, 10\ns_cselect_b32 s{sRot}, s{sT+1}, s{sT}")
    for i in range(1, 10):
        P(f"s_add_u32 s{sRot+i}, s{sRot+i-1}, 1\ns_cmp_eq_u32 s{sRot+i}, 10\ns_cselect_b32 s{sRot+i}, 0, s{sRot+i}")
    P(f"s_mul_i32 s{sT+5}, s{sB}, 184320\ns_lshl_b32 s{sT+6}, s{sH}, 8")
    P.wait_all(vm=False)
    P(f"s_add_u32 s{sX}, s4, s{sT+5}\ns_addc_u32 s{sX+1}, s5, 0\ns_mov_b32 s{sX+2}, 184320\ns_mov_b32 s{sX+3}, 0x20000")
    P(f"s_add_u32 s{sW}, s10, s{sT+6}\ns_addc_u32 s{sW+1}, s11, 0\ns_sub_u32 s{sW+2}, {640*8192}, s{sT+6}\ns_mov_b32 s{sW+3}, 0x20000")
    head = P.render()
    cw = f"L_Cw_{name}:\n  s_waitcnt lgkmcnt(0)\n"
    body = head + gen_H(name, stamps, cfg) + cw + gen_C(name, stamps, cfg)
    return kernel_head(name) + body + kernel_desc(name, 512, 100, 256)
```

```python
import sys, json
from k3 import gen_k1
NAME = "standalone__gqa_block_cached__near_ridge_kernel"
def build(out, stamps=False, cfg=None):
    hdr = open("standalone__gqa_block_cached__near_ridge.s.ref").read().split("\n")
    hdr = [l for l in hdr if l.startswith(";") and "@launch" not in l]
    s = "\n".join(hdr) + "\n"
    s += "; @launch grid=(256,1,1) block=(256,1,1) lds=163840\n"
    s += '.amdgcn_target "amdgcn-amd-amdhsa--gfx950"\n.text\n'
    s += gen_k1(NAME, stamps, cfg)
    open(out, "w").write(s)
if __name__ == "__main__":
    a = sys.argv[1:]
    if not a:
        build("v8_st.s", True)
        build("standalone__gqa_block_cached__near_ridge.s", False)
    for i in range(0, len(a), 2):
        build(f"dev/{a[i]}.s", True, json.loads(a[i+1]))
```
